```python
import torch

def _softmax(x, axis=-1):
    return torch.softmax(x, dim=axis)

def _gelu(x):
    return torch.nn.functional.gelu(x, approximate='tanh')

def _silu(x):
    return torch.nn.functional.silu(x)

def _sigmoid(x):
    return torch.sigmoid(x)

def _layernorm(x, axis=-1, eps=1e-05):
    m = x.mean(dim=axis, keepdim=True)
    v = x.var(dim=axis, keepdim=True, unbiased=False)
    return (x - m) / torch.sqrt(v + eps)

def _scatter_add(tgt, idx, src, axis=0):
    return tgt.clone().index_add_(axis, idx, src)

def _segment_sum(src, seg, n):
    out = torch.zeros((n,) + src.shape[1:], dtype=src.dtype)
    return out.index_add_(0, seg, src)

def _pad(x, pw):
    flat = tuple((v for pair in reversed(pw) for v in pair))
    return torch.nn.functional.pad(x, flat)
kernel_name = 'adaLN_cond__sliding_block_cached__glu_gated_swiglu__prompt'

def setup_inputs():

    _w = lambda a: (lambda t: t.to(torch.bfloat16) if t.is_floating_point() else t)(torch.as_tensor(a))

    def _A_setup():
        B, Sq, D = (1, 2048, 576)
        Hq, Hkv, Sk, Dh = (32, 16, 2048, 128)
        assert Hq % Hkv == 0, (Hq, Hkv)
        return {'x': _w((lambda *s: torch.randn(*s, dtype=torch.bfloat16) * 0.05)(B, Sq, D)), 'k_cache': _w((lambda *s: torch.randn(*s, dtype=torch.bfloat16) * 1.6)(B, Hkv, Sk, Dh)), 'v_cache': _w((lambda *s: torch.randn(*s, dtype=torch.bfloat16) * 0.8)(B, Hkv, Sk, Dh)), 'wq': _w((lambda *s: torch.randn(*s, dtype=torch.bfloat16) * 1.6)(D, Hq * Dh) * D ** (-0.5)), 'wo': _w((lambda *s: torch.randn(*s, dtype=torch.bfloat16) * 0.8)(Hq * Dh, D) * (Hq * Dh) ** (-0.5))}
    _A_in = _A_setup()

    def _B_setup():
        B, S, D, F = (1, 2048, 576, 4608)
        return {'x': _w((lambda *s: torch.randn(*s, dtype=torch.bfloat16) * 0.05)(B, S, D)), 'w1': _w((lambda *s: torch.randn(*s, dtype=torch.bfloat16) * 0.4)(D, F) * (2.0 / D) ** 0.5), 'w3': _w((lambda *s: torch.randn(*s, dtype=torch.bfloat16) * 0.4)(D, F) * (2.0 / D) ** 0.5), 'w2': _w((lambda *s: torch.randn(*s, dtype=torch.bfloat16) * 0.4)(F, D) * (2.0 / F) ** 0.5)}
    _B_in = _B_setup()
    return {'A_x': _A_in['x'], 'A_k_cache': _A_in['k_cache'], 'A_v_cache': _A_in['v_cache'], 'A_wq': _A_in['wq'], 'A_wo': _A_in['wo'], 'B_x': _B_in['x'], 'B_w1': _B_in['w1'], 'B_w3': _B_in['w3'], 'B_w2': _B_in['w2'], 'c': _w((lambda *s: torch.randn(*s, dtype=torch.bfloat16) * 0.1)(1, 576) * 8.0), 'w_mod': _w((lambda *s: torch.randn(*s, dtype=torch.bfloat16) * 0.1)(576, 6 * 576) * 576 ** (-0.5) * 8.0)}

def reference(A_x, A_k_cache, A_v_cache, A_wq, A_wo, B_x, B_w1, B_w3, B_w2, c, w_mod):

    def _A_ref(x, k_cache, v_cache, wq, wo):
        B, Sq, D = x.shape
        Hq, Dh = (32, 128)
        Hkv, Sk = (k_cache.shape[1], k_cache.shape[2])
        W = min(4096, max(256, Sk // 4))
        rep = Hq // Hkv
        q = (lambda x, *d: x.permute(*d))((x @ wq).reshape(B, Sq, Hq, Dh), 0, 2, 1, 3)
        k = (lambda x, n, axis: torch.repeat_interleave(x, n, dim=axis))(k_cache[:, :, Sk - W:, :], rep, axis=1)
        v = (lambda x, n, axis: torch.repeat_interleave(x, n, dim=axis))(v_cache[:, :, Sk - W:, :], rep, axis=1)
        scores = torch.einsum('bhqd,bhkd->bhqk', q, k) * Dh ** (-0.5)
        p = _softmax(scores, axis=-1)
        o = torch.einsum('bhqk,bhkd->bhqd', p, v)
        return (lambda x, *d: x.permute(*d))(o, 0, 2, 1, 3).reshape(B, Sq, Hq * Dh) @ wo

    def _B_ref(x, w1, w3, w2):
        gate = torch.einsum('bsd,df->bsf', x, w1)
        up = torch.einsum('bsd,df->bsf', x, w3)
        h = _silu(gate) * up
        out = torch.einsum('bsf,fd->bsd', h, w2)
        return out
    x = A_x
    mod = (_silu(c) @ w_mod).reshape(c.shape[0], 6, 1, -1)
    sa, ca, ga, sb, cb, gb = (mod[:, 0].clone(), mod[:, 1].clone(), mod[:, 2].clone(), mod[:, 3].clone(), mod[:, 4].clone(), mod[:, 5].clone())
    h = _layernorm(x, axis=-1) * (1 + ca) + sa
    x = x + ga * _A_ref(h, A_k_cache, A_v_cache, A_wq, A_wo)
    h = _layernorm(x, axis=-1) * (1 + cb) + sb
    x = x + gb * _B_ref(h, B_w1, B_w3, B_w2)
    return x
```

```python
import re


class R:
    __slots__ = ('c', 'i', 'n')

    def __init__(self, c, i, n=1):
        self.c, self.i, self.n = c, i, n

    def __str__(self):
        if self.n == 1:
            return f'{self.c}{self.i}'
        return f'{self.c}[{self.i}:{self.i + self.n - 1}]'

    __repr__ = __str__

    def regs(self):
        return [(self.c, self.i + k) for k in range(self.n)]

    def __getitem__(self, k):
        if isinstance(k, slice):
            st = k.start or 0
            en = self.n if k.stop is None else k.stop
            assert 0 <= st < en <= self.n, (st, en, self.n)
            return R(self.c, self.i + st, en - st)
        assert 0 <= k < self.n, (k, self.n)
        return R(self.c, self.i + k, 1)

    def sub(self, off, n=1):
        assert off + n <= self.n, (off, n, self.n)
        return R(self.c, self.i + off, n)


def v(i, n=1): return R('v', i, n)
def a(i, n=1): return R('a', i, n)
def s(i, n=1): return R('s', i, n)


VCC = R('vcc', 0, 1)
EXEC = R('exec', 0, 1)
M0 = R('m0', 0, 1)
SCC = R('scc', 0, 1)
for _r, _n in ((VCC, 'vcc'), (EXEC, 'exec'), (M0, 'm0')):
    pass


def opstr(o):
    if isinstance(o, R):
        if o.c in ('vcc', 'exec', 'm0'):
            return o.c
        return str(o)
    if isinstance(o, float):
        return repr(o)
    if isinstance(o, int):
        if -16 <= o <= 64:
            return str(o)
        return hex(o & 0xffffffff)
    return str(o)


def regs_of(ops):
    out = set()
    for o in ops:
        if isinstance(o, R):
            out.update(o.regs())
        elif isinstance(o, str):
            m = re.fullmatch(r'-?\|?([vas])(\d+)\|?', o)
            if m:
                out.add((m.group(1), int(m.group(2))))
    return out


TRANS = ('v_exp_f32', 'v_log_f32', 'v_rcp_f32', 'v_rsq_f32', 'v_sqrt_f32', 'v_sin_f32', 'v_cos_f32', 'v_rcp_iflag_f32')


class I:
    __slots__ = ('text', 'defs', 'uses', 'kind', 'passes', 'srcc', 'ab', 'tag', 'keep', 'nop', 'wv', 'wl',
                 'wide', 'data', 'cost', 'note')

    def __init__(self, text, defs=(), uses=(), kind='valu', **kw):
        self.text = text
        self.defs = set(defs)
        self.uses = set(uses)
        self.kind = kind
        self.passes = kw.get('passes', 0)
        self.srcc = kw.get('srcc', set())
        self.ab = kw.get('ab', set())
        self.tag = kw.get('tag')
        self.keep = kw.get('keep')
        self.wide = kw.get('wide', False)
        self.data = kw.get('data', set())
        self.note = kw.get('note')
        self.nop = 0
        self.wv = None
        self.wl = None

    def __repr__(self):
        return self.text


class Loop:
    def __init__(self, label, body, tail):
        self.label, self.body, self.tail = label, body, tail


class Label:
    def __init__(self, name):
        self.name = name


VALU_KINDS = ('valu', 'trans', 'perm', 'rdlane', 'dpp')


class Prog:
    def __init__(self):
        self.items = []
        self.stack = [self.items]
        self.nlabel = 0

    def add(self, it):
        self.stack[-1].append(it)
        return it

    def extend(self, its):
        for x in its:
            self.add(x)

    def capture(self):
        lst = []
        self.stack.append(lst)
        return lst

    def end_capture(self):
        return self.stack.pop()

    def raw(self, text, kind='raw'):
        return self.add(I(text, kind=kind))

    def label(self, name):
        self.add(Label(name))

    def loop_begin(self, label):
        lst = []
        self.stack.append(lst)
        self._loops = getattr(self, '_loops', [])
        self._loops.append(label)

    def loop_end(self, branch_op):
        lst = self.stack.pop()
        label = self._loops.pop()
        tail = I(f'{branch_op} {label}', kind='branch', uses={('scc', 0)})
        self.add(Loop(label, lst, tail))

    def op(self, name, dst, *src, mods='', kind=None, extra_defs=(), extra_uses=()):
        dsts = list(dst) if isinstance(dst, (list, tuple)) else ([dst] if dst is not None else [])
        text = name + ' ' + ', '.join(opstr(x) for x in dsts + list(src))
        if mods:
            text += ' ' + mods
        defs = regs_of(dsts) | set(extra_defs)
        uses = regs_of(src) | set(extra_uses)
        base = re.sub(r'_e(32|64)$', '', name)
        if kind is None:
            if name.startswith('s_'):
                kind = 'salu'
            elif base in TRANS:
                kind = 'trans'
            elif base.startswith('v_permlane'):
                kind = 'perm'
            elif base.startswith('v_readfirstlane') or base.startswith('v_readlane'):
                kind = 'rdlane'
            elif 'row_' in mods or 'quad_perm' in mods or 'wave_' in mods or 'row_bcast' in mods:
                kind = 'dpp'
            else:
                kind = 'valu'
        if kind == 'salu':
            if base.startswith('s_cmp') or base in ('s_add_u32', 's_sub_u32', 's_addc_u32', 's_subb_u32', 's_and_b32', 's_or_b32',
                                                    's_lshl_b32', 's_lshr_b32', 's_and_b64', 's_or_b64', 's_xor_b32',
                                                    's_add_i32', 's_sub_i32', 's_min_u32', 's_max_u32', 's_andn2_b64',
                                                    's_bfe_u32', 's_addk_i32', 's_xor_b64', 's_lshl_b64', 's_lshr_b64', 's_ashr_i32'):
                defs.add(('scc', 0))
            if base in ('s_cselect_b32', 's_cselect_b64', 's_addc_u32', 's_subb_u32'):
                uses.add(('scc', 0))
            if base.startswith('s_cmp'):
                uses |= regs_of(dsts)
                defs -= regs_of(dsts)
            if base in ('s_addk_i32', 's_mulk_i32'):
                uses |= regs_of(dsts)
        else:
            if base in ('v_fmac_f32', 'v_mac_f32', 'v_dot2c_f32_bf16', 'v_pk_fmac_f16', 'v_fmamk_f32x'):
                uses |= regs_of(dsts)
            if kind == 'perm':
                uses |= regs_of(dsts)
                if 'swap' in base:
                    defs |= regs_of(src)
            if base.startswith('v_cndmask') and len(src) == 2:
                uses.add(('vcc', 0))
            if base.startswith('v_addc_co') or base.startswith('v_subb_co'):
                pass
            if kind == 'dpp':
                uses |= regs_of(dsts)
            uses.add(('exec', 0))
        return self.add(I(text, defs, uses, kind))

    def __getattr__(self, name):
        if name.startswith('v_') or name.startswith('s_'):
            def f(dst, *src, **kw):
                return self.op(name, dst, *src, **kw)
            return f
        raise AttributeError(name)

    def mfma(self, d, x, y, c, shape='32x32x16'):
        passes = {'32x32x16': 8, '16x16x32': 4}[shape]
        text = f'v_mfma_f32_{shape}_bf16 {d}, {x}, {y}, {opstr(c)}'
        cs = regs_of([c])
        ab = regs_of([x, y])
        return self.add(I(text, regs_of([d]), ab | cs | {('exec', 0)}, 'mfma', passes=passes, srcc=cs, ab=ab))

    def ds_read(self, op, d, addr, offset=0, tag=None):
        assert 0 <= offset < 65536, offset
        text = f'{op} {d}, {addr}' + (f' offset:{offset}' if offset else '')
        return self.add(I(text, regs_of([d]), regs_of([addr]), 'ds_read', tag=tag))

    def ds_write(self, op, addr, data, offset=0, tag=None):
        assert 0 <= offset < 65536, offset
        text = f'{op} {addr}, {data}' + (f' offset:{offset}' if offset else '')
        return self.add(I(text, (), regs_of([addr, data]), 'ds_write', tag=tag, data=regs_of([data])))

    def ds_op(self, text, defs, uses):
        return self.add(I(text, regs_of(defs), regs_of(uses), 'ds_read'))

    def buf_load(self, op, d, voff, srd, soff=0, offset=0, mods='', tag=None):
        assert 0 <= offset < 4096, offset
        vo = f'{voff}' if voff is not None else 'off'
        text = f'{op} {d}, {vo}, {srd}, {opstr(soff)}' + (' offen' if voff is not None else '') + (f' offset:{offset}' if offset else '') + (' ' + mods if mods else '')
        return self.add(I(text, regs_of([d]), regs_of([voff, srd, soff]), 'vm_load', tag=tag))

    def buf_store(self, op, d, voff, srd, soff=0, offset=0, mods='', tag=None):
        assert 0 <= offset < 4096, offset
        vo = f'{voff}' if voff is not None else 'off'
        text = f'{op} {d}, {vo}, {srd}, {opstr(soff)}' + (' offen' if voff is not None else '') + (f' offset:{offset}' if offset else '') + (' ' + mods if mods else '')
        wide = op.endswith('x4') or op.endswith('x3')
        return self.add(I(text, (), regs_of([d, voff, srd, soff]), 'vm_store', tag=tag, wide=wide, data=regs_of([d])))

    def dma(self, voff, srd, soff=0, offset=0, tag='dma', mods='', op='buffer_load_dwordx4'):
        assert 0 <= offset < 4096, offset
        text = f'{op} {voff}, {srd}, {opstr(soff)} offen' + (f' offset:{offset}' if offset else '') + (' ' + mods if mods else '') + ' lds'
        return self.add(I(text, (), regs_of([voff, srd, soff]) | {('m0', 0)}, 'dma', tag=tag))

    def vm_raw(self, text, defs=(), uses=(), tag=None, kind='vm_load'):
        return self.add(I(text, regs_of(defs), regs_of(uses), kind, tag=tag))

    def s_load(self, op, d, base, off):
        text = f'{op} {d}, {base}, {opstr(off)}'
        return self.add(I(text, regs_of([d]), regs_of([base]), 's_load'))

    def wait_tag(self, tag, keep=0):
        return self.add(I('', kind='wait_tag', tag=tag, keep=keep))

    def wait_lds_tag(self, tag, keep=0):
        return self.add(I('', kind='wait_ltag', tag=tag, keep=keep))

    def waitcnt(self, vm=None, lgkm=None):
        it = I('', kind='waitcnt')
        it.keep = (vm, lgkm)
        return self.add(it)

    def touch(self, *regs):
        return self.add(I('', (), regs_of(regs), 'touch'))

    def barrier(self):
        return self.add(I('s_barrier', kind='barrier'))

    def nop(self, n):
        return self.add(I(f's_nop {n - 1}', kind='nop', keep=n))

    def branch(self, op, label):
        uses = set()
        if 'scc' in op: uses.add(('scc', 0))
        return self.add(I(f'{op} {label}', kind='branch', uses=uses))

    def finalize(self):
        for _ in range(50):
            self.changed = False
            st = State()
            self._sim(self.items, st)
            if not self.changed:
                break
        else:
            raise RuntimeError('no fixpoint')

    def _sim(self, items, st):
        for it in items:
            if isinstance(it, Loop):
                for rep in range(3):
                    self._sim(it.body, st)
                    self._visit(it.tail, st)
            elif isinstance(it, Label):
                pass
            else:
                self._visit(it, st)

    def _visit(self, it, st):
        need_v, need_l = None, None
        touched = it.defs | it.uses
        if it.kind == 'wait_tag':
            idx = [k for k, e in enumerate(st.vm) if e[1] == it.tag]
            if len(idx) > it.keep:
                p = idx[len(idx) - 1 - it.keep]
                need_v = len(st.vm) - 1 - p
        elif it.kind == 'wait_ltag':
            idx = [k for k, e in enumerate(st.lg) if e[1] == it.tag]
            if len(idx) > it.keep:
                p = idx[len(idx) - 1 - it.keep]
                need_l = len(st.lg) - 1 - p
        elif it.kind == 'waitcnt':
            need_v, need_l = it.keep
        else:
            for p in range(len(st.vm) - 1, -1, -1):
                if st.vm[p][0] & touched:
                    need_v = len(st.vm) - 1 - p
                    break
            for p in range(len(st.lg) - 1, -1, -1):
                if st.lg[p][0] & touched:
                    need_l = 0 if st.smem else len(st.lg) - 1 - p
                    break
        if need_v is not None:
            need_v = min(need_v, 63)
            if it.wv is None or need_v < it.wv:
                it.wv = need_v
                self.changed = True
        if need_l is not None:
            need_l = min(need_l, 15)
            if it.wl is None or need_l < it.wl:
                it.wl = need_l
                self.changed = True
        waited = False
        if it.wv is not None:
            if len(st.vm) > it.wv:
                st.vm = st.vm[len(st.vm) - it.wv:] if it.wv else []
            waited = True
        if it.wl is not None:
            if len(st.lg) > it.wl:
                st.lg = st.lg[len(st.lg) - it.wl:] if it.wl else []
            if it.wl == 0:
                st.smem = False
            waited = True
        if it.kind in ('wait_tag', 'wait_ltag', 'waitcnt', 'touch'):
            if waited:
                st.push(None)
            return
        need = self._hazard(it, st)
        have_extra = (1 if waited else 0)
        req = max(0, need - have_extra)
        if req > it.nop:
            it.nop = req
            self.changed = True
        if waited:
            st.push(None)
        for _ in range(it.nop):
            st.push(None)
        if it.kind == 'nop':
            for _ in range(it.keep):
                st.push(None)
        else:
            st.push(it)
        if it.kind in ('vm_load', 'vm_store', 'dma'):
            st.vm.append((set(it.defs), it.tag))
            if len(st.vm) > 63:
                st.vm = st.vm[-63:]
        elif it.kind in ('ds_read', 'ds_write'):
            st.lg.append((set(it.defs), it.tag))
            if len(st.lg) > 15:
                st.lg = st.lg[-15:]
        elif it.kind == 's_load':
            st.lg.append((set(it.defs), None))
            st.smem = True

    def _hazard(self, it, st):
        need = 0
        k = it.kind
        is_valu = k in VALU_KINDS
        is_mem = k in ('vm_load', 'vm_store', 'dma', 'ds_read', 'ds_write')
        for dist, p in enumerate(reversed(st.hist)):
            if p is None:
                continue
            req = 0
            pk = p.kind
            if pk in VALU_KINDS:
                vdefs = {r for r in p.defs if r[0] in 'va' and r[0] != 'vcc'}
                vdefs = {r for r in p.defs if r[0] == 'v' or r[0] == 'a'}
                sdefs = {r for r in p.defs if r[0] in ('s', 'vcc')}
                if k == 'mfma' and (vdefs & it.uses):
                    req = max(req, 2)
                if pk == 'trans' and is_valu and (vdefs & it.uses):
                    req = max(req, 1)
                if k == 'rdlane' and (vdefs & it.uses):
                    req = max(req, 1)
                if k in ('perm', 'dpp') and (vdefs & it.uses):
                    req = max(req, 2)
                if sdefs & it.uses:
                    if is_valu:
                        req = max(req, 2)
                    elif k in ('vm_load', 'vm_store', 'dma'):
                        req = max(req, 5)
                    elif k in ('salu', 'branch', 's_load'):
                        req = max(req, 1)
                if ('exec', 0) in p.defs:
                    req = max(req, 5)
            elif pk == 'mfma':
                d = p.defs
                big = p.passes == 8
                if k == 'mfma':
                    if d & it.ab:
                        req = max(req, 12 if big else 8)
                    if d & it.srcc:
                        if not (d == it.srcc and p.passes == it.passes):
                            req = max(req, 10 if big else 6)
                    if (d & it.defs) and not (d == it.srcc):
                        req = max(req, 10 if big else 6)
                elif is_valu or is_mem:
                    if d & (it.uses | it.defs):
                        req = max(req, 12 if big else 8)
                    if (is_valu or k in ('vm_load', 'ds_read')) and (p.srcc & it.defs):
                        req = max(req, 7 if big else 3)
            elif pk == 'vm_store' and p.wide:
                if p.data & it.defs:
                    req = max(req, 2 if is_valu else 1)
            elif pk == 'salu':
                if ('m0', 0) in p.defs and k == 'dma':
                    req = max(req, 1)
                if ('exec', 0) in p.defs and k in ('dpp',):
                    req = max(req, 1)
            if req > dist:
                need = max(need, req - dist)
        return need

    def lines(self, items=None, out=None):
        if out is None:
            out = []
        if items is None:
            items = self.items
        for it in items:
            if isinstance(it, Loop):
                out.append(f'{it.label}:')
                self.lines(it.body, out)
                self._emit(it.tail, out)
            elif isinstance(it, Label):
                out.append(f'{it.name}:')
            else:
                self._emit(it, out)
        return out

    def _emit(self, it, out):
        w = []
        if it.wv is not None:
            w.append(f'vmcnt({it.wv})')
        if it.wl is not None:
            w.append(f'lgkmcnt({it.wl})')
        if w:
            out.append('  s_waitcnt ' + ' '.join(w))
        n = it.nop
        while n > 0:
            m = min(n, 16)
            out.append(f'  s_nop {m - 1}')
            n -= m
        if it.text:
            out.append('  ' + it.text)

    def stats(self, items=None, acc=None):
        if acc is None:
            acc = {}
        if items is None:
            items = self.items
        for it in items:
            if isinstance(it, Loop):
                self.stats(it.body, acc)
            elif isinstance(it, I):
                acc[it.kind] = acc.get(it.kind, 0) + 1
                if it.nop:
                    acc['_nops'] = acc.get('_nops', 0) + it.nop
                if it.wv is not None or it.wl is not None:
                    acc['_waits'] = acc.get('_waits', 0) + 1
        return acc


class State:
    def __init__(self):
        self.vm = []
        self.lg = []
        self.smem = False
        self.hist = []

    def push(self, x):
        self.hist.append(x)
        if len(self.hist) > 24:
            self.hist.pop(0)


def interleave(spine, *streams):
    allf = []
    for si, st in enumerate(streams):
        for k, (pos, ins) in enumerate(st):
            allf.append((pos, si, k, ins))
    allf.sort(key=lambda t: (t[0], t[1], t[2]))
    out = []
    j = 0
    for i, m in enumerate(spine):
        while j < len(allf) and allf[j][0] <= i:
            out.append(allf[j][3])
            j += 1
        out.append(m)
    while j < len(allf):
        out.append(allf[j][3])
        j += 1
    return out


def spread(insts, lo, hi):
    n = len(insts)
    if n == 0:
        return []
    return [(lo + (hi - lo) * (k + 0.5) / n, ins) for k, ins in enumerate(insts)]


def klass(it):
    k = it.kind
    if k in ('ds_read', 'ds_write', 'vm_load', 'vm_store', 'dma'):
        return 'D'
    if k == 'trans':
        return 'E'
    if k in VALU_KINDS:
        return 'V'
    if k in ('touch', 'wait_tag', 'wait_ltag', 'waitcnt'):
        return 'W'
    return 'S'


def gap_cost(seq):
    t = 8
    prev = 'M'
    free = True
    nd = 0
    for it in seq:
        c = klass(it)
        if c in 'SW':
            if free:
                free = False
            else:
                t += 4
            continue
        if c == 'D':
            if prev == 'M':
                t += 4
            elif prev == 'D':
                t += 8
            else:
                t += 12
            free = True
        elif c == 'V':
            t += 4
            free = False
        else:
            t += 8
            free = False
        prev = c
    return t


def order_gap(chosen):
    heads = [list(x) for x in chosen if x]
    out = []
    prev = 'M'
    free = True
    while any(heads):
        cand = [(klass(h[0]), i) for i, h in enumerate(heads) if h]
        def pick(classes):
            for cl in classes:
                for c, i in cand:
                    if c == cl:
                        return i
            return None
        if free:
            i = pick('WSDVE')
        elif prev in ('M', 'D'):
            i = pick('DVESW')
        else:
            i = pick('VESWD')
        it = heads[i].pop(0)
        c = klass(it)
        out.append(it)
        if c in 'SW':
            free = False
        else:
            free = (c == 'D')
            prev = c
    return out


def schedule(spine, streams, budget=32, verbose=False):
    idx = [0] * len(streams)
    out = []
    costs = []
    n = len(spine)
    for g in range(-1, n):
        if g >= 0:
            out.append(spine[g])
        chosen = [[] for _ in streams]
        for si, st in enumerate(streams):
            last = -1
            for k in range(idx[si], len(st)):
                if st[k][2] <= g:
                    last = k
            while idx[si] <= last:
                chosen[si].append(st[idx[si]][0])
                idx[si] += 1
        if g >= 0:
            while True:
                c = [(st[idx[si]][2], si) for si, st in enumerate(streams) if idx[si] < len(st) and st[idx[si]][1] <= g]
                c.sort()
                placed = False
                for _, si in c:
                    trial = [list(x) for x in chosen]
                    trial[si].append(streams[si][idx[si]][0])
                    if gap_cost(order_gap(trial)) <= budget:
                        chosen = trial
                        idx[si] += 1
                        placed = True
                        break
                if not placed:
                    break
        seq = order_gap(chosen)
        if g >= 0:
            costs.append(gap_cost(seq))
        out.extend(seq)
    for si, st in enumerate(streams):
        assert idx[si] == len(st), f'stream {si} has unplaced instructions: {st[idx[si]]}'
    if verbose:
        print('gap costs:', costs, 'total', sum(max(c, 32) for c in costs))
    return out


def win(insts, lo, hi):
    return [(x, lo, hi) for x in insts]


def paced(insts, lo, hi, slack=1):
    n = len(insts)
    out = []
    for k, x in enumerate(insts):
        p = lo + int(k * (hi - lo + 1) / n)
        out.append((x, p, min(hi, p + slack)))
    return out
```

```python
from gen_stream import *
from gen_small import f2u

TR = 'ds_read_b64_tr_b16'


def lane_bits(P, V):
    d = {}
    l = V(); P.v_and_b32(l, 63, v(0)); d['l'] = l
    return d


def gen_attn(name='attn_kernel', stop_after=None, verbose=False, store_mods='', dbg=None):
    P = Prog()
    S = Alloc(s, 4, 100)
    V = Alloc(v, 1, 64)
    done = f'{name}_done'
    exit_guard(P, 256, done)
    ptr = {k: S(2) for k in ('wq', 'k', 'v', 'wo', 'ws')}
    for k in ptr:
        load_ptr(P, ptr[k], k)
    rQ, rK, rV, rO, rH, rP = S(4), S(4), S(4), S(4), S(4), S(4)
    make_srd(P, rQ, ptr['wq'], SIZE['wq'])
    make_srd(P, rK, ptr['k'], SIZE['k'])
    make_srd(P, rV, ptr['v'], SIZE['v'])
    make_srd(P, rO, ptr['wo'], SIZE['wo'])
    make_srd(P, rH, ptr['ws'], FRAG_BYTES, WS_H1)
    make_srd(P, rP, ptr['ws'], PART_BYTES, WS_PART)
    sg, sT, sW, st, st2 = S(), S(), S(), S(), S()
    P.s_and_b32(sg, s(2), 7)
    P.s_bfe_u32(st, s(2), 0x10003)
    P.s_lshl_b32(st, st, 3)
    P.s_add_u32(sg, sg, st)
    l, t0, t1, t2 = V(), V(), V(), V()
    P.v_lshrrev_b32(t0, 6, v(0))
    P.v_readfirstlane_b32(sW, t0)
    P.v_and_b32(l, 63, v(0))
    P.s_lshr_b32(sT, s(2), 4)
    P.s_lshl_b32(sT, sT, 2)
    P.s_add_u32(sT, sT, sW)
    sW4k = S()
    P.s_lshl_b32(sW4k, sW, 12)
    hh, b2, r4, c4 = V(), V(), V(), V()
    P.v_lshrrev_b32(hh, 5, l)
    P.v_bfe_u32(b2, l, 4, 1)
    P.v_bfe_u32(r4, l, 2, 2)
    P.v_and_b32(c4, 3, l)
    slit = S()

    def mad(d, x, k, y):
        P.s_mov_b32(slit, k)
        if y is None:
            P.v_mul_lo_u32(d, x, slit)
        else:
            P.v_mul_lo_u32(t2, x, slit)
            P.v_add_u32(d, t2, y)

    vq = [V() for _ in range(4)]
    vk = [V() for _ in range(2)]
    vv = [V() for _ in range(2)]
    vo = [V() for _ in range(4)]
    l4 = V()
    P.v_lshrrev_b32(l4, 4, l)
    c16 = V()
    P.v_lshlrev_b32(c16, 4, c4)
    w8 = S()
    P.s_lshl_b32(w8, sW, 3)
    for i in range(4):
        P.v_add_u32(t0, w8, r4)
        if i >> 1:
            P.v_add_u32(t0, 4, t0)
        P.v_lshlrev_b32(t0, 13, t0)
        P.v_lshlrev_b32(t1, 6, l4)
        P.v_add_u32(t0, t0, t1)
        P.v_add_u32(t0, t0, c16)
        if i & 1:
            P.v_add_u32(vq[i], 256, t0)
        else:
            P.v_mov_b32(vq[i], t0)
    wpar = S()
    P.s_and_b32(wpar, sW, 1)
    for i in range(2):
        P.v_bfe_u32(t0, l, 1, 3)
        P.v_add_u32(t0, w8, t0)
        P.v_lshlrev_b32(t0, 8, t0)
        P.v_lshlrev_b32(t1, 5, l4)
        P.v_add_u32(t0, t0, t1)
        P.v_and_b32(t1, 1, l)
        P.v_xor_b32(t1, wpar, t1)
        P.v_lshlrev_b32(t1, 4, t1)
        P.v_add_u32(t0, t0, t1)
        P.v_add_u32(vk[i], 128 * i, t0)
        P.v_add_u32(t0, w8, r4)
        P.v_lshlrev_b32(t0, 8, t0)
        P.v_lshlrev_b32(t1, 6, l4)
        P.v_add_u32(t0, t0, t1)
        P.v_add_u32(t0, t0, c16)
        P.v_add_u32(vv[i], 1024 * i, t0)
    w32 = S()
    P.s_lshl_b32(w32, sW, 5)
    for i in range(4):
        P.v_lshlrev_b32(t0, 2, hh)
        P.v_add_u32(t0, t0, r4)
        P.v_add_u32(t0, w32, t0)
        if i:
            P.v_add_u32(t0, 8 * i, t0)
        P.v_lshlrev_b32(t1, 6, b2)
        P.v_add_u32(t1, t1, c16)
        mad(vo[i], t0, 1152, t1)
    aQ, aK, aV, aO = [V(), V()], [V(), V()], [V(), V()], [V(), V()]
    r64 = V()
    P.v_lshlrev_b32(r64, 6, r4)
    P.v_lshlrev_b32(t0, 11, hh)
    P.v_add_u32(t0, t0, r64)
    P.v_lshlrev_b32(t1, 5, b2)
    P.v_add_u32(t0, t0, t1)
    P.v_and_b32(t1, 1, c4)
    P.v_lshlrev_b32(t1, 4, t1)
    P.v_add_u32(t0, t0, t1)
    P.v_lshrrev_b32(t1, 1, c4)
    P.v_lshlrev_b32(t1, 3, t1)
    P.v_add_u32(aQ[0], t0, t1)
    cm = V()
    P.v_lshlrev_b32(t0, 5, b2)
    P.v_lshlrev_b32(t1, 3, c4)
    P.v_add_u32(t0, t0, t1)
    P.v_add_u32(cm, t0, r64)
    P.v_lshlrev_b32(t0, 10, hh)
    P.v_add_u32(aV[0], t0, cm)
    P.v_lshlrev_b32(t0, 9, hh)
    P.v_add_u32(aO[0], t0, cm)
    P.v_bfe_u32(t0, l, 3, 2)
    P.v_lshlrev_b32(t1, 12, t0)
    P.v_and_b32(t0, 1, t0)
    P.v_xor_b32(t0, t0, hh)
    P.v_lshlrev_b32(t0, 4, t0)
    P.v_add_u32(t1, t1, t0)
    P.v_and_b32(t0, 7, l)
    P.v_lshlrev_b32(t0, 5, t0)
    P.v_add_u32(aK[0], t1, t0)
    for x in (aQ, aK, aV, aO):
        P.v_add_u32(x[1], 0x10000, x[0])
    vl16 = V()
    P.v_lshlrev_b32(vl16, 4, l)
    vP = V()
    P.v_bfe_u32(t0, l, 3, 2)
    P.v_lshlrev_b32(t1, 7, hh)
    mad(vP, t0, 147456, t1)
    P.v_and_b32(t0, 7, l)
    P.v_lshlrev_b32(t0, 4, t0)
    P.v_add_u32(vP, vP, t0)
    sQb, sKb, sOb, sHb, sPb = S(), S(), S(), S(), S()
    P.s_lshl_b32(sQb, sg, 9)
    P.s_mul_i32(sKb, sg, 524288)
    P.s_add_u32(sKb, sKb, 1536 * 256)
    P.s_mul_i32(sOb, sg, 256 * 1152)
    P.s_mul_i32(sHb, sT, 36 * 1024)
    P.s_mul_i32(sPb, sT, 4 * 147456)
    P.s_mul_i32(st, sg, 9216)
    P.s_add_u32(sPb, sPb, st)
    sD, sD2, sHo = S(), S(), S()

    QACC = [v(64 + 16 * i, 16) for i in range(8)]
    QF = lambda head, ks: v(64 + 32 * head + 4 * ks, 4)
    SB = lambda buf, head: v(128 + 32 * buf + 16 * head, 16)
    CI = [v(192, 16), v(208, 16)]
    LS = [[v(224), v(225)], [v(226), v(227)]]
    TMP = [v(228 + i) for i in range(12)]
    HB = [a(4 * i, 4) for i in range(36)]
    OACC = lambda head, dt: a(64 * head + 16 * dt, 16)
    STAGE = [a(144 + 4 * i, 4) for i in range(8)]
    OF = lambda kap: v(64 + 4 * kap, 4)
    PACC = lambda st_, tile: v(128 + 32 * st_ + 16 * tile, 16)
    PK = v(192, 16)

    def addr(pair, n, imm):
        slot = (n % NSLOT) * SLOT
        return (pair[slot >> 16], (slot & 0xffff) + imm)

    NQ, NA0 = 18, 18
    NO0 = 35

    def dma_chunk(n):
        P.capture()
        slot = (n % NSLOT) * SLOT
        tag = f'c{n}'
        if n < NQ:
            P.s_add_u32(sD, sQb, n * 32 * 8192)
            for i in range(4):
                P.s_add_u32(M0, sW4k, slot + 1024 * i)
                P.dma(vq[i], rQ, sD, tag=tag)
            P.s_add_u32(sHo, sHb, 2 * n * 1024)
            for j in range(2):
                P.buf_load('buffer_load_dwordx4', HB[2 * n + j], vl16, rH, sHo, offset=1024 * j)
        elif n < NO0:
            j = n - NA0 - 1
            P.s_add_u32(sD, sKb, (j + 1) * 8192)
            if j >= 0:
                P.s_add_u32(sD2, sKb, j * 8192)
            for i in range(2):
                if j < 15:
                    P.s_add_u32(M0, sW4k, slot + 1024 * i)
                    P.dma(vk[i], rK, sD, tag=tag)
            for i in range(2):
                if j >= 0:
                    P.s_add_u32(M0, sW4k, slot + 2048 + 1024 * i)
                    P.dma(vv[i], rV, sD2, tag=tag)
        else:
            m = n - NO0
            p, hf = m >> 1, m & 1
            P.s_add_u32(sD, sOb, hf * 128 * 1152 + p * 128)
            for i in range(4):
                P.s_add_u32(M0, sW4k, slot + 1024 * i)
                P.dma(vo[i], rO, sD, tag=tag)
        return P.end_capture()

    St = Stream(P, STAGE, 6)
    NCH = 53
    last_chunk = {None: NCH, 'Q': NQ, 'A': NO0}[stop_after]
    for n in range(LA, last_chunk):
        St.chunk_dma[n] = dma_chunk(n)
    for n in range(LA):
        P.extend(dma_chunk(n))

    vstreams = []
    for c in range(NQ):
        for ks in range(2):
            kk = 2 * c + ks
            for dt in range(8):
                rd = []
                for q in range(2):
                    ad, imm = addr(aQ, c, (4 * ks + 2 * q) * 2048 + dt * 256)
                    rd.append((TR, 2 * q, 2, ad, imm))
                f = St.new_frag(c, rd)
                St.mfma(QACC[dt], f, HB[kk], QACC[dt] if kk else 0, btouch=(dt == 0))
    qend = len(St.spine)
    P.capture()
    cv = []
    for dt in (0, 4, 1, 5, 2, 6, 3, 7):
        src = QACC[dt]
        for i in range(8):
            P.v_cvt_pk_bf16_f32(v(64 + 8 * dt + i), src[2 * i], src[2 * i + 1])
    cvq = P.end_capture()
    if stop_after == 'Q':
        vstreams.append(win(cvq, qend - 1, qend - 1))
    abase = qend

    def k_frag(n, ks):
        ad, imm = addr(aK, n, ks * 256)
        return St.new_frag(n, [('ds_read_b128', 0, 4, ad, imm)], look=8)

    def v_frag(n, dt, sp):
        rd = []
        for q in range(2):
            ad, imm = addr(aV, n, (2 * sp + q) * 4096 + 2048 + dt * 256)
            rd.append((TR, 2 * q, 2, ad, imm))
        return St.new_frag(n, rd, look=8)

    qk_end, pv_start = {}, {}

    def QK(t):
        n = NA0 + t
        for ks in range(8):
            f = k_frag(n, ks)
            for head in range(2):
                c0 = (0 if t < 2 else CI[head]) if ks == 0 else SB(t & 1, head)
                St.mfma(SB(t & 1, head), f, QF(head, ks), c0)
        qk_end[t] = len(St.spine) - 1

    def PV(t):
        n = NA0 + 1 + t
        pv_start[t] = len(St.spine)
        for sp in range(2):
            for dt in range(4):
                f = v_frag(n, dt, sp)
                for head in range(2):
                    o = OACC(head, dt)
                    St.mfma(o, f, SB(t & 1, head).sub(4 * sp, 4), 0 if (t == 0 and sp == 0) else o)

    if stop_after != 'Q':
        QK(0)
        for j in range(15):
            QK(j + 1)
            PV(j)
        PV(15)
        aend = len(St.spine)
        P.capture()
        for dt in range(8):
            src = QACC[dt]
            for i in range(8):
                P.v_cvt_pk_bf16_f32(v(64 + 8 * dt + i), src[2 * i], src[2 * i + 1])
        cvq = P.end_capture()
        vstreams.append([(x, qend - 1, qend - 1) for x in cvq])
        sm = []
        P.capture()
        for head in range(2):
            P.v_mov_b32(LS[head][0], 0)
            P.v_mov_b32(LS[head][1], 0)
        sm += win(P.end_capture(), 0, qend - 2)

        def softmax(t, lo, hi0, hi1):
            out = []
            for sp in range(2):
                P.capture()
                for i in range(4):
                    rr = 8 * sp + 2 * i
                    A, B = SB(t & 1, 0), SB(t & 1, 1)
                    P.v_exp_f32(A[rr], A[rr])
                    P.v_exp_f32(B[rr], B[rr])
                    P.v_exp_f32(A[rr + 1], A[rr + 1])
                    P.v_exp_f32(B[rr + 1], B[rr + 1])
                    P.v_add_f32(LS[0][0], LS[0][0], A[rr])
                    P.v_add_f32(LS[1][0], LS[1][0], B[rr])
                    P.v_add_f32(LS[0][1], LS[0][1], A[rr + 1])
                    P.v_add_f32(LS[1][1], LS[1][1], B[rr + 1])
                    P.v_cvt_pk_bf16_f32(A[4 * sp + i], A[rr], A[rr + 1])
                    P.v_cvt_pk_bf16_f32(B[4 * sp + i], B[rr], B[rr + 1])
                out += win(P.end_capture(), lo, hi0 if sp == 0 else hi1)
            return out

        P.capture()
        for head in range(2):
            A = SB(0, head)
            m = TMP[head]
            P.v_max3_f32(m, A[0], A[1], A[2])
            for i in range(3, 15, 2):
                P.v_max3_f32(m, m, A[i], A[i + 1])
            P.v_max_f32(m, m, A[15])
        for head in range(2):
            m = TMP[head]
            P.v_mov_b32(TMP[2 + head], m)
        for head in range(2):
            P.op('v_permlane32_swap_b32', TMP[head], TMP[2 + head])
        for head in range(2):
            P.v_max_f32(TMP[head], TMP[head], TMP[2 + head])
        for head in range(2):
            P.v_sub_f32(CI[head][0], 0, TMP[head])
        for i in range(16):
            for head in range(2):
                P.v_add_f32(SB(0, head)[i], SB(0, head)[i], CI[head][0])
        for i in range(1, 16):
            for head in range(2):
                P.v_mov_b32(CI[head][i], CI[head][0])
        mx = P.end_capture()
        sm += win(mx, qk_end[0] + 1, pv_start[0] - 1)
        sm += softmax(0, qk_end[0] + 1, pv_start[0] - 1, pv_start[0] + 7)
        P.capture()
        for i in range(16):
            for head in range(2):
                P.v_add_f32(SB(1, head)[i], SB(1, head)[i], CI[head][0])
        sm += win(P.end_capture(), qk_end[1] + 1, pv_start[1] - 1)
        sm += softmax(1, qk_end[1] + 1, pv_start[1] - 1, pv_start[1] + 7)
        for t in range(2, 16):
            sm += softmax(t, qk_end[t] + 2, pv_start[t] - 1, pv_start[t] + 7)
        vstreams.append(sm)
    if stop_after is None or stop_after == 'A':
        obase = len(St.spine)
        P.capture()
        for head in range(2):
            P.v_add_f32(LS[head][0], LS[head][0], LS[head][1])
        for head in range(2):
            P.v_mov_b32(LS[head][1], LS[head][0])
        for head in range(2):
            P.op('v_permlane32_swap_b32', LS[head][0], LS[head][1])
        for head in range(2):
            P.v_add_f32(LS[head][0], LS[head][0], LS[head][1])
        for head in range(2):
            P.v_rcp_f32(LS[head][0], LS[head][0])
        lfin = P.end_capture()
        nrm = win(lfin, pv_start[15] + 8, aend - 1)
        for kap in range(16):
            head, dt, sp = kap >> 3, (kap >> 1) & 3, kap & 1
            P.capture()
            o = OACC(head, dt)
            for i in range(0, 8, 4):
                for k in range(4):
                    P.v_accvgpr_read_b32(TMP[k], o[8 * sp + i + k])
                for k in range(4):
                    P.v_mul_f32(TMP[k], TMP[k], LS[head][0])
                P.v_cvt_pk_bf16_f32(OF(kap)[i // 2], TMP[0], TMP[1])
                P.v_cvt_pk_bf16_f32(OF(kap)[i // 2 + 1], TMP[2], TMP[3])
            ins = P.end_capture()
            if stop_after == 'A':
                nrm += win(ins, aend - 1, aend - 1)
            else:
                src_done = pv_start[15] + 8 + 2 * dt + head
                nrm += win(ins, max(src_done, aend - 1), max(aend - 1, obase + 2 * kap - 1))
        vstreams.append(nrm)
    if stop_after is None:
        ep = []
        pend = {}
        for p in range(9):
            stt = p & 1
            pstart = len(St.spine)
            for hf in range(2):
                n = NO0 + 2 * p + hf
                for ks in range(8):
                    for tile in range(2):
                        rd = []
                        for q in range(2):
                            ad, imm = addr(aO, n, (4 * ks + 2 * q) * 512 + tile * 256)
                            rd.append((TR, 2 * q, 2, ad, imm))
                        f = St.new_frag(n, rd)
                        acc = PACC(stt, tile)
                        St.mfma(acc, f, OF(8 * hf + ks), acc if (hf or ks) else 0)
            pend[p] = len(St.spine) - 1
        nsp = len(St.spine)
        for p in range(9):
            P.capture()
            for tile in range(2):
                acc = PACC(p & 1, tile)
                for jj in range(2):
                    pk = PK.sub(8 * tile + 4 * jj, 4)
                    for i in range(4):
                        P.v_cvt_pk_bf16_f32(pk[i], acc[8 * jj + 2 * i], acc[8 * jj + 2 * i + 1])
                    sblk = 2 * (2 * p + tile) + jj
                    P.s_add_u32(st2, sPb, sblk * 256)
                    P.buf_store('buffer_store_dwordx4', pk, vP, rP, st2, mods=store_mods)
            ins = P.end_capture()
            lo = pend[p] + 3
            hi = min(pend[p] + 28, nsp - 1)
            if p == 8:
                lo = hi = nsp - 1
            ep += win(ins, lo, hi)
        vstreams.append(ep)

    P.extend(St.build(vstreams, dma_spacing=2, verbose=verbose))

    if stop_after == 'Q':
        P.s_lshl_b32(st, s(2), 2)
        P.s_add_u32(st, st, sW)
        P.s_mul_i32(st, st, 16384)
        for fidx in range(16):
            P.s_add_u32(st2, st, fidx * 1024)
            P.buf_store('buffer_store_dwordx4', v(64 + 4 * fidx, 4), vl16, rP, st2)
    if stop_after == 'A':
        P.s_lshl_b32(st, s(2), 2)
        P.s_add_u32(st, st, sW)
        P.s_mul_i32(st, st, 16384)
        for fidx in range(16):
            P.s_add_u32(st2, st, fidx * 1024)
            P.buf_store('buffer_store_dwordx4', OF(fidx), vl16, rP, st2)
    P.label(done)
    P.raw('s_endpgm')
    print(name, P.stats())
    return kernel_text(name, P, 512, 256)


if __name__ == '__main__':
    import sys
    t, d = gen_attn(stop_after=(sys.argv[1] if len(sys.argv) > 1 else None), verbose=False)
    open('attn.s', 'w').write('.amdgcn_target "amdgcn-amd-amdhsa--gfx950"\n.text\n' + t + '\n')
```

```python
from asmgen import *

ARG = dict(x=0, k=8, v=16, wq=24, wo=32, bx=40, w1=48, w3=56, w2=64, c=72, wmod=80, out=88, dbg=96, ws=104)
SIZE = dict(x=2048 * 576 * 2, k=16 * 2048 * 128 * 2, v=16 * 2048 * 128 * 2, wq=576 * 4096 * 2, wo=4096 * 576 * 2,
            w1=576 * 4608 * 2, w3=576 * 4608 * 2, w2=4608 * 576 * 2, c=576 * 2, wmod=576 * 3456 * 2,
            out=2048 * 576 * 2, dbg=256)

WS_MOD = 0
WS_H1 = 0x10000
WS_X2 = 0x300000
WS_H2 = 0x800000
WS_PART = 0x1000000
FRAG_BYTES = 64 * 36 * 1024
X2_BYTES = 2048 * 576 * 4
PART_BYTES = 16 * 2048 * 576 * 2
MOD_BYTES = 3456 * 4


class Alloc:
    def __init__(self, mk, start, end):
        self.mk, self.cur, self.end = mk, start, end
        self.hi = start

    def __call__(self, n=1, align=None):
        if align is None:
            align = 1 if n == 1 else (2 if n in (2, 3) else 4)
        self.cur = (self.cur + align - 1) // align * align
        r = self.mk(self.cur, n)
        self.cur += n
        self.hi = max(self.hi, self.cur)
        assert self.cur <= self.end, f'out of registers: {self.cur} > {self.end}'
        return r

    def mark(self):
        return self.cur

    def reset(self, m):
        self.cur = m


def load_ptr(P, dst, name):
    P.s_load('s_load_dwordx2', dst, s(0, 2), ARG[name])


def make_srd(P, srd, ptr, size, add=0):
    if add:
        P.s_add_u32(srd[0], ptr[0], add)
        P.s_addc_u32(srd[1], ptr[1], 0)
    else:
        P.s_mov_b32(srd[0], ptr[0])
        P.s_mov_b32(srd[1], ptr[1])
    P.s_mov_b32(srd[2], size)
    P.s_mov_b32(srd[3], 0x20000)


def kernel_text(name, P, nvgpr, accum, nsgpr=100):
    P.finalize()
    lines = [f'.globl {name}', '.p2align 8', f'.type {name},@function', f'{name}:']
    lines += P.lines()
    desc = ['.p2align 6', f'.amdhsa_kernel {name}',
            f'  .amdhsa_next_free_vgpr {nvgpr}', f'  .amdhsa_next_free_sgpr {nsgpr}',
            f'  .amdhsa_accum_offset {accum}', '  .amdhsa_group_segment_fixed_size 0',
            '  .amdhsa_kernarg_size 112', '  .amdhsa_user_sgpr_count 2',
            '  .amdhsa_user_sgpr_kernarg_segment_ptr 1', '  .amdhsa_system_sgpr_workgroup_id_x 1',
            '.end_amdhsa_kernel']
    return '\n'.join(lines), '\n'.join(desc)


def exit_guard(P, nwg, label):
    P.s_cmp_ge_u32(s(2), nwg)
    P.branch('s_cbranch_scc1', label)


def bf16_lo(P, d, x):
    P.v_lshlrev_b32(d, 16, x)


def bf16_hi(P, d, x):
    P.v_and_b32(d, 0xffff0000, x)
```

```python
from gen_stream import *
from gen_small import f2u, LOG2E

TR = 'ds_read_b64_tr_b16'


def gen_ffn(name='ffn_kernel', stop_after=None, verbose=False, store_mods=''):
    P = Prog()
    S = Alloc(s, 4, 100)
    V = Alloc(v, 1, 56)
    done = f'{name}_done'
    exit_guard(P, 256, done)
    ptr = {k: S(2) for k in ('w1', 'w3', 'w2', 'ws')}
    for k in ptr:
        load_ptr(P, ptr[k], k)
    r1, r3, r2, rH, rP = S(4), S(4), S(4), S(4), S(4)
    make_srd(P, r1, ptr['w1'], SIZE['w1'])
    make_srd(P, r3, ptr['w3'], SIZE['w3'])
    make_srd(P, r2, ptr['w2'], SIZE['w2'])
    make_srd(P, rH, ptr['ws'], FRAG_BYTES, WS_H2)
    make_srd(P, rP, ptr['ws'], PART_BYTES, WS_PART)
    sj, sT, sW, st, st2 = S(), S(), S(), S(), S()
    P.s_and_b32(sj, s(2), 7)
    P.s_bfe_u32(st, s(2), 0x10003)
    P.s_lshl_b32(st, st, 3)
    P.s_add_u32(sj, sj, st)
    l, t0, t1, t2 = V(), V(), V(), V()
    P.v_lshrrev_b32(t0, 6, v(0))
    P.v_readfirstlane_b32(sW, t0)
    P.v_and_b32(l, 63, v(0))
    P.s_lshr_b32(sT, s(2), 4)
    P.s_lshl_b32(sT, sT, 2)
    P.s_add_u32(sT, sT, sW)
    sW4k, sW3k = S(), S()
    P.s_lshl_b32(sW4k, sW, 12)
    P.s_mul_i32(sW3k, sW, 3072)
    hh, b2, r4, c4 = V(), V(), V(), V()
    P.v_lshrrev_b32(hh, 5, l)
    P.v_bfe_u32(b2, l, 4, 1)
    P.v_bfe_u32(r4, l, 2, 2)
    P.v_and_b32(c4, 3, l)
    slit = S()

    def mad(d, x, k, y):
        P.s_mov_b32(slit, k)
        P.v_mul_lo_u32(t2, x, slit)
        P.v_add_u32(d, t2, y)

    sodd, sF0, sRowA = S(), S(), S()
    P.s_and_b32(sodd, sj, 1)
    P.s_lshr_b32(sF0, sj, 1)
    P.s_mul_i32(sF0, sF0, 576)
    P.s_mul_i32(st, sodd, 320)
    P.s_add_u32(sRowA, sF0, st)
    colp = V()
    P.v_lshlrev_b32(t0, 6, b2)
    P.v_lshlrev_b32(t1, 4, c4)
    P.v_add_u32(colp, t0, t1)
    hr = V()
    P.v_lshlrev_b32(t0, 2, hh)
    P.v_add_u32(hr, t0, r4)
    vg = [V(), V()]
    w16 = S()
    P.s_lshl_b32(w16, sW, 4)
    for i in range(2):
        P.v_add_u32(t0, w16, hr)
        if i:
            P.v_add_u32(t0, 8, t0)
        mad(vg[i], t0, 9216, colp)
    vd, vd2 = [V(), V(), V()], [V(), V(), V()]
    w24 = S()
    P.s_mul_i32(w24, sW, 24)
    sadj = S()
    P.s_mul_i32(sadj, sodd, 288 * 1152)
    for i in range(3):
        P.v_add_u32(t0, w24, hr)
        if i:
            P.v_add_u32(t0, 8 * i, t0)
        mad(vd[i], t0, 1152, colp)
        P.v_cmp_gt_u32(VCC, 64, t0)
        P.v_mov_b32(t1, sadj)
        P.v_cndmask_b32(t1, 0, t1)
        P.v_add_u32(vd2[i], vd[i], t1)
    aO, aS = [V(), V()], [V(), V()]
    P.v_lshlrev_b32(t0, 9, hh)
    P.v_lshlrev_b32(t1, 6, r4)
    P.v_add_u32(t0, t0, t1)
    P.v_lshlrev_b32(t1, 5, b2)
    P.v_add_u32(t0, t0, t1)
    P.v_lshlrev_b32(t1, 3, c4)
    P.v_add_u32(aO[0], t0, t1)
    P.v_add_u32(aO[1], 0x10000, aO[0])
    P.s_lshl_b32(st, sodd, 8)
    P.v_add_u32(aS[0], st, aO[0])
    P.v_add_u32(aS[1], st, aO[1])
    vl16 = V()
    P.v_lshlrev_b32(vl16, 4, l)
    vP = V()
    P.v_bfe_u32(t0, l, 3, 2)
    P.v_lshlrev_b32(t1, 7, hh)
    mad(vP, t0, 147456, t1)
    P.v_and_b32(t0, 7, l)
    P.v_lshlrev_b32(t0, 4, t0)
    P.v_add_u32(vP, vP, t0)
    sGb, sSb, sDb, sDb2, sHb, sPb = S(), S(), S(), S(), S(), S()
    P.s_lshl_b32(sGb, sRowA, 1)
    P.s_add_u32(sSb, sF0, 256)
    P.s_lshl_b32(sSb, sSb, 1)
    P.s_mul_i32(sDb, sRowA, 1152)
    P.s_add_u32(sDb2, sDb, 192 * 1152)
    P.s_sub_u32(sDb2, sDb2, sadj)
    P.s_mul_i32(sHb, sT, 36 * 1024)
    P.s_mul_i32(sPb, sT, 4 * 147456)
    P.s_mul_i32(st, sj, 9216)
    P.s_add_u32(sPb, sPb, st)
    sD, sHo, sNL = S(), S(), S()
    P.s_mov_b32(sNL, f2u(-LOG2E))

    GACC = lambda stt, i: v(56 + 64 * stt + 16 * i, 16)
    HF = lambda kap: v(184 + 4 * kap, 4)
    TMP = [V() for _ in range(8)]
    HB = [a(4 * i, 4) for i in range(36)]
    STAGE = [a(144 + 4 * i, 4) for i in range(8)]
    DACC = lambda stt, tile: v(88 + 32 * stt + 16 * tile, 16)
    PK = v(152, 16)

    def addr(pair, n, imm):
        slot = (n % NSLOT) * SLOT
        return (pair[slot >> 16], (slot & 0xffff) + imm)

    ND0 = 45
    NCH = 72

    def dma_chunk(n):
        P.capture()
        slot = (n % NSLOT) * SLOT
        tag = f'c{n}'
        if n < ND0:
            p, kc = divmod(n, 9)
            if p < 4:
                P.s_add_u32(sD, sGb, kc * 64 * 9216 + p * 128)
            else:
                P.s_add_u32(sD, sSb, kc * 64 * 9216)
            for i in range(4):
                P.s_add_u32(M0, sW4k, slot + 1024 * i)
                P.dma(vg[i >> 1], r3 if (i & 1) else r1, sD, tag=tag)
            if n < 9:
                P.s_add_u32(sHo, sHb, 4 * n * 1024)
                for jx in range(4):
                    P.buf_load('buffer_load_dwordx4', HB[4 * n + jx], vl16, rH, sHo, offset=1024 * jx)
        else:
            p, c = divmod(n - ND0, 3)
            if c < 2:
                P.s_add_u32(sD, sDb, c * 96 * 1152 + p * 128)
            else:
                P.s_add_u32(sD, sDb2, p * 128)
            for i in range(3):
                P.s_add_u32(M0, sW3k, slot + 1024 * i)
                P.dma((vd2 if c == 2 else vd)[i], r2, sD, tag=tag)
        return P.end_capture()

    St = Stream(P, STAGE, 6)
    last_chunk = ND0 if stop_after == 'G' else NCH
    for n in range(LA, last_chunk):
        St.chunk_dma[n] = dma_chunk(n)
    for n in range(LA):
        P.extend(dma_chunk(n))

    vstreams = []
    gend = {}
    for p in range(5):
        stt = p & 1
        for kc in range(9):
            n = 9 * p + kc
            for ks in range(4):
                kk = 4 * kc + ks
                for tile in range(2 if p < 4 else 1):
                    for mat in range(2):
                        rd = []
                        for q in range(2):
                            if p < 4:
                                ad, imm = addr(aO, n, (2 * ks + q) * 2048 + mat * 1024 + tile * 256)
                            else:
                                ad, imm = addr(aS, n, (2 * ks + q) * 2048 + mat * 1024)
                            rd.append((TR, 2 * q, 2, ad, imm))
                        f = St.new_frag(n, rd)
                        acc = GACC(stt, 2 * tile + mat)
                        St.mfma(acc, f, HB[kk], acc if kk else 0, btouch=(p == 0 and tile == 0 and mat == 0))
        gend[p] = len(St.spine) - 1
    gtot = len(St.spine)

    def swiglu(G, U, q):
        P.capture()
        for e0 in range(0, 16, 2):
            ts = [TMP[(e0 % 4)], TMP[(e0 % 4) + 1]]
            es = [e0, e0 + 1]
            for t, e in zip(ts, es): P.v_mul_f32(t, sNL, G[e])
            for t, e in zip(ts, es): P.v_exp_f32(t, t)
            for t, e in zip(ts, es): P.v_mul_f32(U[e], G[e], U[e])
            for t, e in zip(ts, es): P.v_add_f32(t, 1.0, t)
            for t, e in zip(ts, es): P.v_rcp_f32(t, t)
            P.v_mul_f32(U[es[0]], U[es[0]], ts[0])
            P.v_mul_f32(U[es[1]], U[es[1]], ts[1])
            P.v_cvt_pk_bf16_f32(HF(2 * q + (e0 >> 3))[(e0 & 7) >> 1], U[e0], U[e0 + 1])
        return P.end_capture()

    epi = []
    dbase = gtot
    for p in range(5):
        stt = p & 1
        lo = gend[p] + 3
        if p < 3:
            hi = gend[p + 1] - 1
            epi += win(swiglu(GACC(stt, 0), GACC(stt, 1), 2 * p), lo, hi)
            epi += win(swiglu(GACC(stt, 2), GACC(stt, 3), 2 * p + 1), lo, hi)
        elif stop_after == 'G':
            e = gtot - 1
            if p == 3:
                epi += win(swiglu(GACC(stt, 0), GACC(stt, 1), 6), lo, e)
                epi += win(swiglu(GACC(stt, 2), GACC(stt, 3), 7), lo, e)
            else:
                epi += win(swiglu(GACC(stt, 0), GACC(stt, 1), 8), e, e)
        elif p == 3:
            epi += win(swiglu(GACC(stt, 0), GACC(stt, 1), 6), lo, dbase + 22)
            epi += win(swiglu(GACC(stt, 2), GACC(stt, 3), 7), lo, dbase + 26)
        else:
            epi += win(swiglu(GACC(stt, 0), GACC(stt, 1), 8), lo, dbase + 30)
    vstreams.append(epi)

    if stop_after is None:
        pend = {}
        for p in range(9):
            stt = p & 1
            for c in range(3):
                n = ND0 + 3 * p + c
                for ks in range(6):
                    for tile in range(2):
                        rd = []
                        for q in range(2):
                            ad, imm = addr(aO, n, (4 * ks + 2 * q) * 512 + tile * 256)
                            rd.append((TR, 2 * q, 2, ad, imm))
                        f = St.new_frag(n, rd)
                        acc = DACC(stt, tile)
                        St.mfma(acc, f, HF(6 * c + ks), acc if (c or ks) else 0)
            pend[p] = len(St.spine) - 1
        nsp = len(St.spine)
        ep = []
        for p in range(9):
            P.capture()
            for tile in range(2):
                acc = DACC(p & 1, tile)
                for jj in range(2):
                    pk = PK.sub(8 * tile + 4 * jj, 4)
                    for i in range(4):
                        P.v_cvt_pk_bf16_f32(pk[i], acc[8 * jj + 2 * i], acc[8 * jj + 2 * i + 1])
                    sblk = 2 * (2 * p + tile) + jj
                    P.s_add_u32(st2, sPb, sblk * 256)
                    P.buf_store('buffer_store_dwordx4', pk, vP, rP, st2, mods=store_mods)
            ins = P.end_capture()
            lo = pend[p] + 3
            hi = min(pend[p] + 32, nsp - 1)
            if p == 8:
                lo = hi = nsp - 1
            ep += win(ins, lo, hi)
        vstreams.append(ep)

    P.extend(St.build(vstreams, dma_spacing=2, verbose=verbose))

    if stop_after == 'G':
        P.s_lshl_b32(st, s(2), 2)
        P.s_add_u32(st, st, sW)
        P.s_mul_i32(st, st, 18432)
        for fidx in range(18):
            P.s_add_u32(st2, st, fidx * 1024)
            P.buf_store('buffer_store_dwordx4', HF(fidx), vl16, rP, st2)
    P.label(done)
    P.raw('s_endpgm')
    r = kernel_text(name, P, 512, 256)
    print(name, P.stats())
    return r


if __name__ == '__main__':
    import sys
    t, d = gen_ffn(stop_after=(sys.argv[1] if len(sys.argv) > 1 else None), verbose=True)
    open('ffn.s', 'w').write('.amdgcn_target "amdgcn-amd-amdhsa--gfx950"\n.text\n' + t + '\n')
```

```python
from gen_common import *

LOG2E = 1.4426950408889634
QSCALE = LOG2E * 128 ** -0.5


def f2u(x):
    import struct
    return struct.unpack('<I', struct.pack('<f', x))[0]


def gen_mod(name='mod_kernel'):
    P = Prog()
    S = Alloc(s, 4, 100)
    V = Alloc(v, 1, 128)
    done = f'{name}_done'
    exit_guard(P, 54, done)
    pc, pw, pws = S(2), S(2), S(2)
    load_ptr(P, pc, 'c'); load_ptr(P, pw, 'wmod'); load_ptr(P, pws, 'ws')
    rc, rw, rm = S(4), S(4), S(4)
    make_srd(P, rc, pc, SIZE['c'])
    make_srd(P, rw, pw, SIZE['wmod'])
    make_srd(P, rm, pws, MOD_BYTES, WS_MOD)
    cc, rg, t = V(), V(), V()
    P.v_and_b32(cc, 7, v(0))
    P.v_lshrrev_b32(rg, 3, v(0))
    voc = V()
    P.v_lshlrev_b32(voc, 1, rg)
    cv = V(18, 1)
    for i in range(18):
        P.buf_load('buffer_load_ushort', cv[i], voc, rc, 0, offset=64 * i)
    vow = V()
    sk = S()
    P.s_mov_b32(sk, 6912)
    P.v_mul_lo_u32(vow, rg, sk)
    P.v_lshlrev_b32(t, 4, cc)
    P.v_add_u32(vow, vow, t)
    scol = S()
    P.s_lshl_b32(scol, s(2), 7)
    wv = V(72, 4)
    so = S()
    for i in range(18):
        P.s_add_u32(so, scol, i * 32 * 6912)
        P.buf_load('buffer_load_dwordx4', wv.sub(4 * i, 4), vow, rw, so)
    sl = S()
    P.s_mov_b32(sl, f2u(-LOG2E))
    e = V()
    for i in range(18):
        P.v_lshlrev_b32(cv[i], 16, cv[i])
        P.v_mul_f32(e, sl, cv[i])
        P.v_exp_f32(e, e)
        P.v_add_f32(e, 1.0, e)
        P.v_rcp_f32(e, e)
        P.v_mul_f32(cv[i], cv[i], e)
    acc = V(8, 4)
    lo, hi = V(), V()
    for i in range(18):
        for j in range(4):
            P.v_lshlrev_b32(lo, 16, wv[4 * i + j])
            P.v_and_b32(hi, 0xffff0000, wv[4 * i + j])
            if i == 0:
                P.v_mul_f32(acc[2 * j], lo, cv[i])
                P.v_mul_f32(acc[2 * j + 1], hi, cv[i])
            else:
                P.v_fmac_f32(acc[2 * j], lo, cv[i])
                P.v_fmac_f32(acc[2 * j + 1], hi, cv[i])
    la = V()
    P.v_lshlrev_b32(la, 8, rg)
    P.v_lshlrev_b32(t, 5, cc)
    P.v_add_u32(la, la, t)
    P.ds_write('ds_write_b128', la, acc[0:4], 0)
    P.ds_write('ds_write_b128', la, acc[4:8], 16)
    P.waitcnt(lgkm=0)
    P.barrier()
    P.v_cmp_gt_u32(VCC, 64, v(0))
    sv = S(2)
    P.op('s_and_saveexec_b64', sv, VCC, extra_defs=[('exec', 0)], extra_uses=[('exec', 0)])
    P.branch('s_cbranch_execz', done)
    P.v_lshlrev_b32(la, 2, v(0))
    rd = wv
    for i in range(32):
        P.ds_read('ds_read_b32', rd[i], la, i * 256)
    for i in range(1, 32):
        P.v_add_f32(rd[0], rd[0], rd[i])
    P.s_lshl_b32(so, s(2), 8)
    P.buf_store('buffer_store_dword', rd[0], la, rm, so)
    P.label(done)
    P.raw('s_endpgm')
    return kernel_text(name, P, 128, 128)


def xor_reduce_8_16_32(P, x, t):
    P.op('v_add_f32', x, x, x, mods='row_ror:8 row_mask:0xf bank_mask:0xf')
    P.v_mov_b32(t, x)
    P.op('v_permlane16_swap_b32', x, t)
    P.v_add_f32(x, x, t)
    P.v_mov_b32(t, x)
    P.op('v_permlane32_swap_b32', x, t)
    P.v_add_f32(x, x, t)


def gen_row(mode, name):
    P = Prog()
    S = Alloc(s, 4, 100)
    V = Alloc(v, 1, 128)
    done = f'{name}_done'
    exit_guard(P, 256, done)
    px, pws, po = S(2), S(2), S(2)
    load_ptr(P, pws, 'ws')
    rm = S(4)
    if mode != 'r2':
        load_ptr(P, px, 'x')
        rx = S(4)
        make_srd(P, rx, px, SIZE['x'])
    else:
        load_ptr(P, po, 'out')
        ro = S(4)
        make_srd(P, ro, po, SIZE['out'])
    make_srd(P, rm, pws, MOD_BYTES, WS_MOD)
    if mode != 'ln1':
        rp = S(4)
        make_srd(P, rp, pws, PART_BYTES, WS_PART)
        rx2 = S(4)
        make_srd(P, rx2, pws, X2_BYTES, WS_X2)
    if mode != 'r2':
        rh = S(4)
        make_srd(P, rh, pws, FRAG_BYTES, WS_H1 if mode == 'ln1' else WS_H2)
    t8, hh, ss, t, t2 = V(), V(), V(), V(), V()
    P.v_and_b32(t8, 7, v(0))
    P.v_bfe_u32(hh, v(0), 3, 1)
    P.v_lshrrev_b32(ss, 4, v(0))
    f0 = V()
    P.v_lshlrev_b32(f0, 4, ss)
    P.v_lshlrev_b32(t, 2, hh)
    P.v_add_u32(f0, f0, t)
    st = S()
    if mode != 'ln1':
        vp = V()
        P.v_lshlrev_b32(vp, 4, v(0))
        sp = S()
        P.s_mul_i32(sp, s(2), 147456)
        pv = V(64, 4)
        for g in range(16):
            P.s_add_u32(st, sp, g * 9216)
            P.buf_load('buffer_load_dwordx4', pv.sub(4 * g, 4), vp, rp, st)
    vx = V()
    P.s_lshl_b32(st, s(2), 3)
    P.v_add_u32(t, st, t8)
    P.v_mul_u32_u24(t, 576, t)
    P.v_add_u32(t, t, f0)
    P.v_lshlrev_b32(vx, 1, t)
    xv = V(8, 4)
    if mode != 'r2':
        xr = V(4, 2)
        P.buf_load('buffer_load_dwordx2', xr[0:2], vx, rx, 0)
        P.buf_load('buffer_load_dwordx2', xr[2:4], vx, rx, 0, offset=16)
    else:
        vx2 = V()
        P.v_lshlrev_b32(vx2, 5, v(0))
        sx2 = S()
        P.s_mul_i32(sx2, s(2), 18432)
        P.buf_load('buffer_load_dwordx4', xv[0:4], vx2, rx2, sx2)
        P.buf_load('buffer_load_dwordx4', xv[4:8], vx2, rx2, sx2, offset=16)
    vm = V()
    P.v_lshlrev_b32(vm, 2, f0)

    def load_mod(idx):
        r = V(8, 4)
        P.s_mov_b32(st, idx * 576 * 4)
        P.buf_load('buffer_load_dwordx4', r[0:4], vm, rm, st)
        P.buf_load('buffer_load_dwordx4', r[4:8], vm, rm, st, offset=32)
        return r
    if mode == 'ln1':
        msc, msh = load_mod(1), load_mod(0)
    elif mode == 'r1':
        mg, msc, msh = load_mod(2), load_mod(4), load_mod(3)
    else:
        mg = load_mod(5)
    if mode != 'r2':
        for j in range(4):
            P.v_lshlrev_b32(xv[2 * j], 16, xr[j])
            P.v_and_b32(xv[2 * j + 1], 0xffff0000, xr[j])
    if mode != 'ln1':
        acc = V(8, 4)
        for g in range(16):
            for j in range(4):
                r = pv[4 * g + j]
                if g == 0:
                    P.v_lshlrev_b32(acc[2 * j], 16, r)
                    P.v_and_b32(acc[2 * j + 1], 0xffff0000, r)
                else:
                    P.v_lshlrev_b32(t, 16, r)
                    P.v_and_b32(t2, 0xffff0000, r)
                    P.v_add_f32(acc[2 * j], acc[2 * j], t)
                    P.v_add_f32(acc[2 * j + 1], acc[2 * j + 1], t2)
        for j in range(8):
            P.v_fmac_f32(xv[j], mg[j], acc[j])
    if mode == 'r2':
        ov = V(4, 2)
        for j in range(4):
            P.v_cvt_pk_bf16_f32(ov[j], xv[2 * j], xv[2 * j + 1])
        P.buf_store('buffer_store_dwordx2', ov[0:2], vx, ro, 0)
        P.buf_store('buffer_store_dwordx2', ov[2:4], vx, ro, 0, offset=16)
    else:
        if mode == 'r1':
            vx2 = V()
            P.v_lshlrev_b32(vx2, 5, v(0))
            sx2 = S()
            P.s_mul_i32(sx2, s(2), 18432)
            P.buf_store('buffer_store_dwordx4', xv[0:4], vx2, rx2, sx2)
            P.buf_store('buffer_store_dwordx4', xv[4:8], vx2, rx2, sx2, offset=16)
        sm = V()
        P.v_add_f32(sm, xv[0], xv[1])
        for j in range(2, 8):
            P.v_add_f32(sm, sm, xv[j])
        xor_reduce_8_16_32(P, sm, t)
        la, lr = (pv[24], pv[25]) if mode == 'r1' else (V(), V())
        P.v_lshrrev_b32(t, 6, v(0))
        P.v_lshlrev_b32(t, 5, t)
        P.v_lshlrev_b32(lr, 2, t8)
        P.v_add_u32(la, t, lr)
        P.ds_write('ds_write_b32', la, sm, 0)
        P.waitcnt(lgkm=0)
        P.barrier()
        rd = pv.sub(0, 9) if mode == 'r1' else V(9, 1)
        for w in range(9):
            P.ds_read('ds_read_b32', rd[w], lr, w * 32)
        for w in range(1, 9):
            P.v_add_f32(rd[0], rd[0], rd[w])
        mean = t2
        sc = S()
        P.s_mov_b32(sc, f2u(1.0 / 576))
        P.v_mul_f32(mean, sc, rd[0])
        for j in range(8):
            P.v_sub_f32(xv[j], xv[j], mean)
        P.v_mul_f32(sm, xv[0], xv[0])
        for j in range(1, 8):
            P.v_fmac_f32(sm, xv[j], xv[j])
        xor_reduce_8_16_32(P, sm, t)
        P.ds_write('ds_write_b32', la, sm, 512)
        P.waitcnt(lgkm=0)
        P.barrier()
        for w in range(9):
            P.ds_read('ds_read_b32', rd[w], lr, 512 + w * 32)
        for w in range(1, 9):
            P.v_add_f32(rd[0], rd[0], rd[w])
        se = S()
        P.s_mov_b32(se, f2u(1e-5))
        P.v_mov_b32(t, se)
        P.v_fmac_f32(t, sc, rd[0])
        P.v_rsq_f32(t, t)
        hv = pv.sub(12, 4) if mode == 'r1' else V(4, 4)
        if mode == 'ln1':
            sq_scale = S()
            P.s_mov_b32(sq_scale, f2u(QSCALE))
        for j in range(8):
            P.v_mul_f32(xv[j], xv[j], t)
            P.v_add_f32(msc[j], 1.0, msc[j])
            P.v_fma_f32(xv[j], xv[j], msc[j], msh[j])
            if mode == 'ln1':
                P.v_mul_f32(xv[j], sq_scale, xv[j])
        for j in range(4):
            P.v_cvt_pk_bf16_f32(hv[j], xv[2 * j], xv[2 * j + 1])
        vh = pv[20] if mode == 'r1' else V()
        P.v_lshlrev_b32(vh, 10, ss)
        P.v_lshlrev_b32(t, 9, hh)
        P.v_add_u32(vh, vh, t)
        P.v_lshlrev_b32(t, 4, t8)
        P.v_add_u32(vh, vh, t)
        sT, sq = S(), S()
        P.s_lshr_b32(sT, s(2), 2)
        P.s_mul_i32(sT, sT, 36 * 1024)
        P.s_and_b32(sq, s(2), 3)
        P.s_lshl_b32(sq, sq, 7)
        P.s_add_u32(sT, sT, sq)
        P.buf_store('buffer_store_dwordx4', hv, vh, rh, sT)
    P.label(done)
    P.raw('s_endpgm')
    return kernel_text(name, P, 128, 128)


if __name__ == '__main__':
    for t, d in [gen_mod(), gen_row('ln1', 'ln1_kernel'), gen_row('r1', 'r1_kernel'), gen_row('r2', 'r2_kernel')]:
        print(t)
```

```python
from gen_common import *

NSLOT = 8
SLOT = 16384
LA = 6


class Stream:
    def __init__(self, P, stage, look):
        self.P = P
        self.stage = stage
        self.look = look
        self.spine = []
        self.frags = []
        self.touch = []
        self.chunk_dma = {}
        self.extra_touch = []

    def new_frag(self, chunk, reads, look=None):
        f = dict(chunk=chunk, reads=reads, first=None, last=None, id=len(self.frags), look=look or self.look)
        self.frags.append(f)
        return f

    def reg(self, f):
        return self.stage[f['id'] % len(self.stage)]

    def mfma(self, d, f, b, c, btouch=False):
        P = self.P
        i = len(self.spine)
        if f['first'] is None:
            f['first'] = i
        f['last'] = i
        P.capture()
        P.mfma(d, self.reg(f), b, c)
        self.spine += P.end_capture()
        if btouch:
            self.extra_touch.append((i, b))
        return i

    def build(self, other_streams, dma_spacing=2, verbose=False, first_reads_outside=True, tail_cost=None):
        P = self.P
        n = len(self.spine)
        reads, touches, sw, dm = [], [], [], []
        ns = len(self.stage)
        first_read_gap = {}
        for f in self.frags:
            g = f['first'] - f['look']
            if f['id'] >= ns:
                prev = self.frags[f['id'] - ns]
                g = max(g, prev['last'])
            g = max(g, -1)
            f['gap'] = g
            assert g < f['first']
            P.capture()
            st = self.reg(f)
            for (op, lo, cnt, addr, imm) in f['reads']:
                P.ds_read(op, st.sub(lo, cnt), addr, imm)
            reads += win(P.end_capture(), g, g)
            c = f['chunk']
            if c not in first_read_gap:
                first_read_gap[c] = g
            P.capture()
            P.touch(st)
            tg = f['first'] - 1
            touches += win(P.end_capture(), tg, tg)
        for (i, b) in self.extra_touch:
            P.capture()
            P.touch(b)
            touches += win(P.end_capture(), i - 1, i - 1)
        touches.sort(key=lambda x: x[1])
        chunks = sorted(first_read_gap)
        self.bar_gap = {}
        for c in chunks:
            gb = first_read_gap[c] - 1
            self.bar_gap[c] = gb
            gb = max(gb, -1)
            P.capture()
            P.wait_tag(f'c{c}', 0)
            P.barrier()
            sw += win(P.end_capture(), gb, gb)
        for c in chunks:
            d = self.chunk_dma.get(c + LA)
            if not d:
                continue
            gb = max(self.bar_gap[c], -1)
            g = gb + 1
            pend = []
            for x in d:
                if x.kind == 'dma' or x.kind == 'vm_load':
                    gg = min(g, n - 1)
                    for y in pend:
                        dm.append((y, min(max(gb + 1, gg - 1), gg), gg))
                    pend = []
                    dm.append((x, gg, gg))
                    g += dma_spacing
                else:
                    pend.append(x)
            for y in pend:
                dm.append((y, min(g, n - 1), min(g, n - 1)))
        pre = [x for x in sw if x[2] < 0]
        sw = [x for x in sw if x[2] >= 0]
        out = [x[0] for x in pre]
        out += schedule(self.spine, [touches, reads, sw, dm] + other_streams, verbose=verbose)
        return out
```

```python
import sys
from gen_small import gen_mod, gen_row
from gen_common import *

HEADER = '''; adaLN block: LN1 -> Q proj -> sliding-window GQA attention -> out proj -> LN2 -> SwiGLU FFN, hand-scheduled for gfx950.
'''

def build(kernels):
    out = [HEADER.rstrip()]
    for name, td, grid, block, lds in kernels:
        out.append(f'; @launch kernel={name} grid=({grid},1,1) block=({block},1,1) lds={lds}')
    out.append('.amdgcn_target "amdgcn-amd-amdhsa--gfx950"')
    out.append('.text')
    seen = set()
    for name, td, grid, block, lds in kernels:
        if name not in seen:
            out.append(td[0])
            seen.add(name)
    out.append('.section .rodata,"a"')
    seen = set()
    for name, td, grid, block, lds in kernels:
        if name not in seen:
            out.append(td[1])
            seen.add(name)
    return '\n'.join(out) + '\n'

def make(variant):
    from gen_attn import gen_attn
    ks = [('mod_kernel', gen_mod(), 54, 256, 8192),
          ('ln1_kernel', gen_row('ln1', 'ln1_kernel'), 256, 576, 1024)]
    if variant in ('Q', 'A'):
        ks.append(('attn_kernel', gen_attn(stop_after=variant), 256, 256, 131072))
        return build(ks)
    ks.append(('attn_kernel', gen_attn(), 256, 256, 131072))
    ks.append(('r1_kernel', gen_row('r1', 'r1_kernel'), 256, 576, 1024))
    if variant == 'R1':
        return build(ks)
    from gen_ffn import gen_ffn
    if variant in ('G',):
        ks.append(('ffn_kernel', gen_ffn(stop_after=variant), 256, 256, 131072))
        return build(ks)
    ks.append(('ffn_kernel', gen_ffn(), 256, 256, 131072))
    ks.append(('r2_kernel', gen_row('r2', 'r2_kernel'), 256, 576, 1024))
    return build(ks)

if __name__ == '__main__':
    variant = sys.argv[1] if len(sys.argv) > 1 else 'full'
    path = sys.argv[2] if len(sys.argv) > 2 else 'out.s'
    txt = make(variant)
    open(path, 'w').write(txt)
    print(path, len(txt), 'bytes')
```

```python
from gen_stream import *
from gen_small import f2u

TR = 'ds_read_b64_tr_b16'


def lane_bits(P, V):
    d = {}
    l = V(); P.v_and_b32(l, 63, v(0)); d['l'] = l
    return d


def gen_attn(name='attn_kernel', stop_after=None, verbose=False, store_mods='', stamps=False, nostore=False, prefetch=0, dbg=None):
    P = Prog()
    S = Alloc(s, 4, 100)
    V = Alloc(v, 1, 64)
    done = f'{name}_done'
    exit_guard(P, 256, done)
    if stamps:
        SR = [S(2) for _ in range(10)]
        stamp_now(P, SR[0]); stamp_real(P, SR[8])
    if prefetch:
        pfv = V(2, 1); pft = V()
        code_prefetch(P, S, pft, pfv, prefetch)
    ptr = {k: S(2) for k in ('wq', 'k', 'v', 'wo', 'ws')}
    for k in ptr:
        load_ptr(P, ptr[k], k)
    rQ, rK, rV, rO, rH, rP = S(4), S(4), S(4), S(4), S(4), S(4)
    make_srd(P, rQ, ptr['wq'], SIZE['wq'])
    make_srd(P, rK, ptr['k'], SIZE['k'])
    make_srd(P, rV, ptr['v'], SIZE['v'])
    make_srd(P, rO, ptr['wo'], SIZE['wo'])
    make_srd(P, rH, ptr['ws'], FRAG_BYTES, WS_H1)
    make_srd(P, rP, ptr['ws'], PART_BYTES, WS_PART)
    if stamps == 2:
        stamp_now(P, SR[1])
    sg, sT, sW, st, st2 = S(), S(), S(), S(), S()
    P.s_and_b32(sg, s(2), 7)
    P.s_bfe_u32(st, s(2), 0x10003)
    P.s_lshl_b32(st, st, 3)
    P.s_add_u32(sg, sg, st)
    l, t0, t1, t2 = V(), V(), V(), V()
    P.v_lshrrev_b32(t0, 6, v(0))
    P.v_readfirstlane_b32(sW, t0)
    P.v_and_b32(l, 63, v(0))
    P.s_lshr_b32(sT, s(2), 4)
    P.s_lshl_b32(sT, sT, 2)
    P.s_add_u32(sT, sT, sW)
    sW4k = S()
    P.s_lshl_b32(sW4k, sW, 12)
    hh, b2, r4, c4 = V(), V(), V(), V()
    P.v_lshrrev_b32(hh, 5, l)
    P.v_bfe_u32(b2, l, 4, 1)
    P.v_bfe_u32(r4, l, 2, 2)
    P.v_and_b32(c4, 3, l)
    slit = S()

    def mad(d, x, k, y):
        P.s_mov_b32(slit, k)
        if y is None:
            P.v_mul_lo_u32(d, x, slit)
        else:
            P.v_mul_lo_u32(t2, x, slit)
            P.v_add_u32(d, t2, y)

    vq = [V() for _ in range(4)]
    vk = [V() for _ in range(2)]
    vv = [V() for _ in range(2)]
    vo = [V() for _ in range(4)]
    l4 = V()
    P.v_lshrrev_b32(l4, 4, l)
    c16 = V()
    P.v_lshlrev_b32(c16, 4, c4)
    w8 = S()
    P.s_lshl_b32(w8, sW, 3)
    for i in range(4):
        P.v_add_u32(t0, w8, r4)
        if i >> 1:
            P.v_add_u32(t0, 4, t0)
        P.v_lshlrev_b32(t0, 13, t0)
        P.v_lshlrev_b32(t1, 6, l4)
        P.v_add_u32(t0, t0, t1)
        P.v_add_u32(t0, t0, c16)
        if i & 1:
            P.v_add_u32(vq[i], 256, t0)
        else:
            P.v_mov_b32(vq[i], t0)
    wpar = S()
    P.s_and_b32(wpar, sW, 1)
    for i in range(2):
        P.v_bfe_u32(t0, l, 1, 3)
        P.v_add_u32(t0, w8, t0)
        P.v_lshlrev_b32(t0, 8, t0)
        P.v_lshlrev_b32(t1, 5, l4)
        P.v_add_u32(t0, t0, t1)
        P.v_and_b32(t1, 1, l)
        P.v_xor_b32(t1, wpar, t1)
        P.v_lshlrev_b32(t1, 4, t1)
        P.v_add_u32(t0, t0, t1)
        P.v_add_u32(vk[i], 128 * i, t0)
        P.v_add_u32(t0, w8, r4)
        P.v_lshlrev_b32(t0, 8, t0)
        P.v_lshlrev_b32(t1, 6, l4)
        P.v_add_u32(t0, t0, t1)
        P.v_add_u32(t0, t0, c16)
        P.v_add_u32(vv[i], 1024 * i, t0)
    w32 = S()
    P.s_lshl_b32(w32, sW, 5)
    for i in range(4):
        P.v_lshlrev_b32(t0, 2, hh)
        P.v_add_u32(t0, t0, r4)
        P.v_add_u32(t0, w32, t0)
        if i:
            P.v_add_u32(t0, 8 * i, t0)
        P.v_lshlrev_b32(t1, 6, b2)
        P.v_add_u32(t1, t1, c16)
        mad(vo[i], t0, 1152, t1)
    aQ, aK, aV, aO = [V(), V()], [V(), V()], [V(), V()], [V(), V()]
    r64 = V()
    P.v_lshlrev_b32(r64, 6, r4)
    P.v_lshlrev_b32(t0, 11, hh)
    P.v_add_u32(t0, t0, r64)
    P.v_lshlrev_b32(t1, 5, b2)
    P.v_add_u32(t0, t0, t1)
    P.v_and_b32(t1, 1, c4)
    P.v_lshlrev_b32(t1, 4, t1)
    P.v_add_u32(t0, t0, t1)
    P.v_lshrrev_b32(t1, 1, c4)
    P.v_lshlrev_b32(t1, 3, t1)
    P.v_add_u32(aQ[0], t0, t1)
    cm = V()
    P.v_lshlrev_b32(t0, 5, b2)
    P.v_lshlrev_b32(t1, 3, c4)
    P.v_add_u32(t0, t0, t1)
    P.v_add_u32(cm, t0, r64)
    P.v_lshlrev_b32(t0, 10, hh)
    P.v_add_u32(aV[0], t0, cm)
    P.v_lshlrev_b32(t0, 9, hh)
    P.v_add_u32(aO[0], t0, cm)
    P.v_bfe_u32(t0, l, 3, 2)
    P.v_lshlrev_b32(t1, 12, t0)
    P.v_and_b32(t0, 1, t0)
    P.v_xor_b32(t0, t0, hh)
    P.v_lshlrev_b32(t0, 4, t0)
    P.v_add_u32(t1, t1, t0)
    P.v_and_b32(t0, 7, l)
    P.v_lshlrev_b32(t0, 5, t0)
    P.v_add_u32(aK[0], t1, t0)
    for x in (aQ, aK, aV, aO):
        P.v_add_u32(x[1], 0x10000, x[0])
    vl16 = V()
    P.v_lshlrev_b32(vl16, 4, l)
    vP = V()
    P.v_bfe_u32(t0, l, 3, 2)
    P.v_lshlrev_b32(t1, 7, hh)
    mad(vP, t0, 147456, t1)
    P.v_and_b32(t0, 7, l)
    P.v_lshlrev_b32(t0, 4, t0)
    P.v_add_u32(vP, vP, t0)
    sQb, sKb, sOb, sHb, sPb = S(), S(), S(), S(), S()
    P.s_lshl_b32(sQb, sg, 9)
    P.s_mul_i32(sKb, sg, 524288)
    P.s_add_u32(sKb, sKb, 1536 * 256)
    P.s_mul_i32(sOb, sg, 256 * 1152)
    P.s_mul_i32(sHb, sT, 36 * 1024)
    P.s_mul_i32(sPb, sT, 4 * 147456)
    P.s_mul_i32(st, sg, 9216)
    P.s_add_u32(sPb, sPb, st)
    sD, sD2, sHo = S(), S(), S()

    QACC = [v(64 + 16 * i, 16) for i in range(8)]
    QF = lambda head, ks: v(64 + 32 * head + 4 * ks, 4)
    SB = lambda buf, head: v(128 + 32 * buf + 16 * head, 16)
    CI = [v(192, 16), v(208, 16)]
    LS = [[v(224), v(225)], [v(226), v(227)]]
    TMP = [v(228 + i) for i in range(12)]
    HB = [a(4 * i, 4) for i in range(36)]
    OACC = lambda head, dt: a(64 * head + 16 * dt, 16)
    STAGE = [a(144 + 4 * i, 4) for i in range(8)]
    OF = lambda kap: v(64 + 4 * kap, 4)
    PACC = lambda st_, tile: v(128 + 32 * st_ + 16 * tile, 16)
    PK = v(192, 16)

    def addr(pair, n, imm):
        slot = (n % NSLOT) * SLOT
        return (pair[slot >> 16], (slot & 0xffff) + imm)

    NQ, NA0 = 18, 18
    NO0 = 35

    def dma_chunk(n):
        P.capture()
        slot = (n % NSLOT) * SLOT
        tag = f'c{n}'
        if n < NQ:
            P.s_add_u32(sD, sQb, n * 32 * 8192)
            for i in range(4):
                P.s_add_u32(M0, sW4k, slot + 1024 * i)
                P.dma(vq[i], rQ, sD, tag=tag)
            P.s_add_u32(sHo, sHb, 2 * n * 1024)
            for j in range(2):
                P.buf_load('buffer_load_dwordx4', HB[2 * n + j], vl16, rH, sHo, offset=1024 * j)
        elif n < NO0:
            j = n - NA0 - 1
            P.s_add_u32(sD, sKb, (j + 1) * 8192)
            if j >= 0:
                P.s_add_u32(sD2, sKb, j * 8192)
            for i in range(2):
                if j < 15:
                    P.s_add_u32(M0, sW4k, slot + 1024 * i)
                    P.dma(vk[i], rK, sD, tag=tag)
            for i in range(2):
                if j >= 0:
                    P.s_add_u32(M0, sW4k, slot + 2048 + 1024 * i)
                    P.dma(vv[i], rV, sD2, tag=tag)
        else:
            m = n - NO0
            p, hf = m >> 1, m & 1
            P.s_add_u32(sD, sOb, hf * 128 * 1152 + p * 128)
            for i in range(4):
                P.s_add_u32(M0, sW4k, slot + 1024 * i)
                P.dma(vo[i], rO, sD, tag=tag)
        return P.end_capture()

    St = Stream(P, STAGE, 6)
    NCH = 53
    last_chunk = {None: NCH, 'Q': NQ, 'A': NO0}[stop_after]
    for n in range(LA, last_chunk):
        St.chunk_dma[n] = dma_chunk(n)
    if stamps == 2:
        stamp_now(P, SR[2])
    for n in range(LA):
        P.extend(dma_chunk(n))
        if stamps == 2 and n in (0, 1, 3):
            stamp_now(P, SR[{0: 3, 1: 4, 3: 5}[n]])

    vstreams = []
    for c in range(NQ):
        for ks in range(2):
            kk = 2 * c + ks
            for dt in range(8):
                rd = []
                for q in range(2):
                    ad, imm = addr(aQ, c, (4 * ks + 2 * q) * 2048 + dt * 256)
                    rd.append((TR, 2 * q, 2, ad, imm))
                f = St.new_frag(c, rd)
                St.mfma(QACC[dt], f, HB[kk], QACC[dt] if kk else 0, btouch=(dt == 0))
    qend = len(St.spine)
    P.capture()
    cv = []
    for dt in (0, 4, 1, 5, 2, 6, 3, 7):
        src = QACC[dt]
        for i in range(8):
            P.v_cvt_pk_bf16_f32(v(64 + 8 * dt + i), src[2 * i], src[2 * i + 1])
    cvq = P.end_capture()
    if stop_after == 'Q':
        vstreams.append(win(cvq, qend - 1, qend - 1))
    abase = qend

    def k_frag(n, ks):
        ad, imm = addr(aK, n, ks * 256)
        return St.new_frag(n, [('ds_read_b128', 0, 4, ad, imm)], look=8)

    def v_frag(n, dt, sp):
        rd = []
        for q in range(2):
            ad, imm = addr(aV, n, (2 * sp + q) * 4096 + 2048 + dt * 256)
            rd.append((TR, 2 * q, 2, ad, imm))
        return St.new_frag(n, rd, look=8)

    qk_end, pv_start = {}, {}

    def QK(t):
        n = NA0 + t
        for ks in range(8):
            f = k_frag(n, ks)
            for head in range(2):
                c0 = (0 if t < 2 else CI[head]) if ks == 0 else SB(t & 1, head)
                St.mfma(SB(t & 1, head), f, QF(head, ks), c0)
        qk_end[t] = len(St.spine) - 1

    def PV(t):
        n = NA0 + 1 + t
        pv_start[t] = len(St.spine)
        for sp in range(2):
            for dt in range(4):
                f = v_frag(n, dt, sp)
                for head in range(2):
                    o = OACC(head, dt)
                    St.mfma(o, f, SB(t & 1, head).sub(4 * sp, 4), 0 if (t == 0 and sp == 0) else o)

    if stop_after != 'Q':
        QK(0)
        for j in range(15):
            QK(j + 1)
            PV(j)
        PV(15)
        aend = len(St.spine)
        P.capture()
        for dt in range(8):
            src = QACC[dt]
            for i in range(8):
                P.v_cvt_pk_bf16_f32(v(64 + 8 * dt + i), src[2 * i], src[2 * i + 1])
        cvq = P.end_capture()
        vstreams.append([(x, qend - 1, qend - 1) for x in cvq])
        sm = []
        P.capture()
        for head in range(2):
            P.v_mov_b32(LS[head][0], 0)
            P.v_mov_b32(LS[head][1], 0)
        sm += win(P.end_capture(), 0, qend - 2)

        def softmax(t, lo, hi0, hi1):
            out = []
            for sp in range(2):
                P.capture()
                for i in range(4):
                    rr = 8 * sp + 2 * i
                    A, B = SB(t & 1, 0), SB(t & 1, 1)
                    P.v_exp_f32(A[rr], A[rr])
                    P.v_exp_f32(B[rr], B[rr])
                    P.v_exp_f32(A[rr + 1], A[rr + 1])
                    P.v_exp_f32(B[rr + 1], B[rr + 1])
                    P.v_add_f32(LS[0][0], LS[0][0], A[rr])
                    P.v_add_f32(LS[1][0], LS[1][0], B[rr])
                    P.v_add_f32(LS[0][1], LS[0][1], A[rr + 1])
                    P.v_add_f32(LS[1][1], LS[1][1], B[rr + 1])
                    P.v_cvt_pk_bf16_f32(A[4 * sp + i], A[rr], A[rr + 1])
                    P.v_cvt_pk_bf16_f32(B[4 * sp + i], B[rr], B[rr + 1])
                out += win(P.end_capture(), lo, hi0 if sp == 0 else hi1)
            return out

        P.capture()
        for head in range(2):
            A = SB(0, head)
            m = TMP[head]
            P.v_max3_f32(m, A[0], A[1], A[2])
            for i in range(3, 15, 2):
                P.v_max3_f32(m, m, A[i], A[i + 1])
            P.v_max_f32(m, m, A[15])
        for head in range(2):
            m = TMP[head]
            P.v_mov_b32(TMP[2 + head], m)
        for head in range(2):
            P.op('v_permlane32_swap_b32', TMP[head], TMP[2 + head])
        for head in range(2):
            P.v_max_f32(TMP[head], TMP[head], TMP[2 + head])
        for head in range(2):
            P.v_sub_f32(CI[head][0], 0, TMP[head])
        for i in range(16):
            for head in range(2):
                P.v_add_f32(SB(0, head)[i], SB(0, head)[i], CI[head][0])
        for i in range(1, 16):
            for head in range(2):
                P.v_mov_b32(CI[head][i], CI[head][0])
        mx = P.end_capture()
        sm += win(mx, qk_end[0] + 1, pv_start[0] - 1)
        sm += softmax(0, qk_end[0] + 1, pv_start[0] - 1, pv_start[0] + 7)
        P.capture()
        for i in range(16):
            for head in range(2):
                P.v_add_f32(SB(1, head)[i], SB(1, head)[i], CI[head][0])
        sm += win(P.end_capture(), qk_end[1] + 1, pv_start[1] - 1)
        sm += softmax(1, qk_end[1] + 1, pv_start[1] - 1, pv_start[1] + 7)
        for t in range(2, 16):
            sm += softmax(t, qk_end[t] + 2, pv_start[t] - 1, pv_start[t] + 7)
        vstreams.append(sm)
    if stop_after is None or stop_after == 'A':
        obase = len(St.spine)
        P.capture()
        for head in range(2):
            P.v_add_f32(LS[head][0], LS[head][0], LS[head][1])
        for head in range(2):
            P.v_mov_b32(LS[head][1], LS[head][0])
        for head in range(2):
            P.op('v_permlane32_swap_b32', LS[head][0], LS[head][1])
        for head in range(2):
            P.v_add_f32(LS[head][0], LS[head][0], LS[head][1])
        for head in range(2):
            P.v_rcp_f32(LS[head][0], LS[head][0])
        lfin = P.end_capture()
        nrm = win(lfin, pv_start[15] + 8, aend - 1)
        for kap in range(16):
            head, dt, sp = kap >> 3, (kap >> 1) & 3, kap & 1
            P.capture()
            o = OACC(head, dt)
            for i in range(0, 8, 4):
                for k in range(4):
                    P.v_accvgpr_read_b32(TMP[k], o[8 * sp + i + k])
                for k in range(4):
                    P.v_mul_f32(TMP[k], TMP[k], LS[head][0])
                P.v_cvt_pk_bf16_f32(OF(kap)[i // 2], TMP[0], TMP[1])
                P.v_cvt_pk_bf16_f32(OF(kap)[i // 2 + 1], TMP[2], TMP[3])
            ins = P.end_capture()
            if stop_after == 'A':
                nrm += win(ins, aend - 1, aend - 1)
            else:
                src_done = pv_start[15] + 8 + 2 * dt + head
                nrm += win(ins, max(src_done, aend - 1), max(aend - 1, obase + 2 * kap - 1))
        vstreams.append(nrm)
    if stop_after is None:
        ep = []
        pend = {}
        for p in range(9):
            stt = p & 1
            pstart = len(St.spine)
            for hf in range(2):
                n = NO0 + 2 * p + hf
                for ks in range(8):
                    for tile in range(2):
                        rd = []
                        for q in range(2):
                            ad, imm = addr(aO, n, (4 * ks + 2 * q) * 512 + tile * 256)
                            rd.append((TR, 2 * q, 2, ad, imm))
                        f = St.new_frag(n, rd)
                        acc = PACC(stt, tile)
                        St.mfma(acc, f, OF(8 * hf + ks), acc if (hf or ks) else 0)
            pend[p] = len(St.spine) - 1
        nsp = len(St.spine)
        for p in range(9):
            P.capture()
            for tile in range(2):
                acc = PACC(p & 1, tile)
                for jj in range(2):
                    pk = PK.sub(8 * tile + 4 * jj, 4)
                    for i in range(4):
                        P.v_cvt_pk_bf16_f32(pk[i], acc[8 * jj + 2 * i], acc[8 * jj + 2 * i + 1])
                    sblk = 2 * (2 * p + tile) + jj
                    P.s_add_u32(st2, sPb, sblk * 256)
                    if not nostore:
                        P.buf_store('buffer_store_dwordx4', pk, vP, rP, st2, mods=store_mods)
            ins = P.end_capture()
            lo = pend[p] + 3
            hi = min(pend[p] + 28, nsp - 1)
            if p == 8:
                lo = hi = nsp - 1
            ep += win(ins, lo, hi)
        vstreams.append(ep)

    if stamps == 2:
        stamp_now(P, SR[6])
    elif stamps:
        stamp_now(P, SR[1])
        vstreams.append(St.stamp_stream([0, qend - 1, pv_start[0], aend - 1, len(St.spine) - 1], SR[2:7]))
    P.extend(St.build(vstreams, dma_spacing=2, verbose=verbose))
    if stamps:
        P.waitcnt(vm=0)
        stamp_now(P, SR[7]); stamp_real(P, SR[9])
        stamps_out(P, S, (t0, t1), SR, ptr['ws'], 0)

    if stop_after == 'Q':
        P.s_lshl_b32(st, s(2), 2)
        P.s_add_u32(st, st, sW)
        P.s_mul_i32(st, st, 16384)
        for fidx in range(16):
            P.s_add_u32(st2, st, fidx * 1024)
            P.buf_store('buffer_store_dwordx4', v(64 + 4 * fidx, 4), vl16, rP, st2)
    if stop_after == 'A':
        P.s_lshl_b32(st, s(2), 2)
        P.s_add_u32(st, st, sW)
        P.s_mul_i32(st, st, 16384)
        for fidx in range(16):
            P.s_add_u32(st2, st, fidx * 1024)
            P.buf_store('buffer_store_dwordx4', OF(fidx), vl16, rP, st2)
    P.label(done)
    P.raw('s_endpgm')
    print(name, P.stats())
    return kernel_text(name, P, 512, 256)


if __name__ == '__main__':
    import sys
    t, d = gen_attn(stop_after=(sys.argv[1] if len(sys.argv) > 1 else None), verbose=False)
    open('attn.s', 'w').write('.amdgcn_target "amdgcn-amd-amdhsa--gfx950"\n.text\n' + t + '\n')
```

```python
from asmgen import *

ARG = dict(x=0, k=8, v=16, wq=24, wo=32, bx=40, w1=48, w3=56, w2=64, c=72, wmod=80, out=88, dbg=96, ws=104)
SIZE = dict(x=2048 * 576 * 2, k=16 * 2048 * 128 * 2, v=16 * 2048 * 128 * 2, wq=576 * 4096 * 2, wo=4096 * 576 * 2,
            w1=576 * 4608 * 2, w3=576 * 4608 * 2, w2=4608 * 576 * 2, c=576 * 2, wmod=576 * 3456 * 2,
            out=2048 * 576 * 2, dbg=256)

WS_MOD = 0
WS_H1 = 0x10000
WS_X2 = 0x300000
WS_H2 = 0x800000
WS_PART = 0x1000000
FRAG_BYTES = 64 * 36 * 1024
X2_BYTES = 2048 * 576 * 4
PART_BYTES = 16 * 2048 * 576 * 2
MOD_BYTES = 3456 * 4


class Alloc:
    def __init__(self, mk, start, end):
        self.mk, self.cur, self.end = mk, start, end
        self.hi = start

    def __call__(self, n=1, align=None):
        if align is None:
            align = 1 if n == 1 else (2 if n in (2, 3) else 4)
        self.cur = (self.cur + align - 1) // align * align
        r = self.mk(self.cur, n)
        self.cur += n
        self.hi = max(self.hi, self.cur)
        assert self.cur <= self.end, f'out of registers: {self.cur} > {self.end}'
        return r

    def mark(self):
        return self.cur

    def reset(self, m):
        self.cur = m


def load_ptr(P, dst, name):
    P.s_load('s_load_dwordx2', dst, s(0, 2), ARG[name])


def make_srd(P, srd, ptr, size, add=0):
    if add:
        P.s_add_u32(srd[0], ptr[0], add)
        P.s_addc_u32(srd[1], ptr[1], 0)
    else:
        P.s_mov_b32(srd[0], ptr[0])
        P.s_mov_b32(srd[1], ptr[1])
    P.s_mov_b32(srd[2], size)
    P.s_mov_b32(srd[3], 0x20000)


def kernel_text(name, P, nvgpr, accum, nsgpr=100):
    P.finalize()
    lines = [f'.globl {name}', '.p2align 8', f'.type {name},@function', f'{name}:']
    lines += P.lines()
    desc = ['.p2align 6', f'.amdhsa_kernel {name}',
            f'  .amdhsa_next_free_vgpr {nvgpr}', f'  .amdhsa_next_free_sgpr {nsgpr}',
            f'  .amdhsa_accum_offset {accum}', '  .amdhsa_group_segment_fixed_size 0',
            '  .amdhsa_kernarg_size 112', '  .amdhsa_user_sgpr_count 2',
            '  .amdhsa_user_sgpr_kernarg_segment_ptr 1', '  .amdhsa_system_sgpr_workgroup_id_x 1',
            '.end_amdhsa_kernel']
    return '\n'.join(lines), '\n'.join(desc)


def exit_guard(P, nwg, label):
    P.s_cmp_ge_u32(s(2), nwg)
    P.branch('s_cbranch_scc1', label)


def bf16_lo(P, d, x):
    P.v_lshlrev_b32(d, 16, x)


def bf16_hi(P, d, x):
    P.v_and_b32(d, 0xffff0000, x)


def code_prefetch(P, S, vtmp, vdst, nbytes, nthreads=256):
    pc = S(2)
    P.add(I(f's_getpc_b64 {pc}', regs_of([pc]), (), 'salu'))
    P.v_lshlrev_b32(vtmp, 7, v(0))
    step = nthreads * 128
    off = 0
    k = 0
    while off < nbytes:
        if off:
            P.v_add_u32(vtmp, step, vtmp)
        P.add(I(f'global_load_dword {vdst[k]}, {vtmp}, {pc}', regs_of([vdst[k]]), regs_of([vtmp, pc]), 'vm_load'))
        off += step
        k += 1
```

```python
from gen_stream import *
from gen_small import f2u, LOG2E

TR = 'ds_read_b64_tr_b16'


def gen_ffn(name='ffn_kernel', stop_after=None, verbose=False, store_mods='', stamps=False, nostore=False, prefetch=0):
    P = Prog()
    S = Alloc(s, 4, 100)
    V = Alloc(v, 1, 56)
    done = f'{name}_done'
    exit_guard(P, 256, done)
    if stamps:
        SR = [S(2) for _ in range(10)]
        stamp_now(P, SR[0]); stamp_real(P, SR[8])
    if prefetch:
        pfv = V(2, 1); pft = V()
        code_prefetch(P, S, pft, pfv, prefetch)
    ptr = {k: S(2) for k in ('w1', 'w3', 'w2', 'ws')}
    for k in ptr:
        load_ptr(P, ptr[k], k)
    r1, r3, r2, rH, rP = S(4), S(4), S(4), S(4), S(4)
    make_srd(P, r1, ptr['w1'], SIZE['w1'])
    make_srd(P, r3, ptr['w3'], SIZE['w3'])
    make_srd(P, r2, ptr['w2'], SIZE['w2'])
    make_srd(P, rH, ptr['ws'], FRAG_BYTES, WS_H2)
    make_srd(P, rP, ptr['ws'], PART_BYTES, WS_PART)
    sj, sT, sW, st, st2 = S(), S(), S(), S(), S()
    P.s_and_b32(sj, s(2), 7)
    P.s_bfe_u32(st, s(2), 0x10003)
    P.s_lshl_b32(st, st, 3)
    P.s_add_u32(sj, sj, st)
    l, t0, t1, t2 = V(), V(), V(), V()
    P.v_lshrrev_b32(t0, 6, v(0))
    P.v_readfirstlane_b32(sW, t0)
    P.v_and_b32(l, 63, v(0))
    P.s_lshr_b32(sT, s(2), 4)
    P.s_lshl_b32(sT, sT, 2)
    P.s_add_u32(sT, sT, sW)
    sW4k, sW3k = S(), S()
    P.s_lshl_b32(sW4k, sW, 12)
    P.s_mul_i32(sW3k, sW, 3072)
    hh, b2, r4, c4 = V(), V(), V(), V()
    P.v_lshrrev_b32(hh, 5, l)
    P.v_bfe_u32(b2, l, 4, 1)
    P.v_bfe_u32(r4, l, 2, 2)
    P.v_and_b32(c4, 3, l)
    slit = S()

    def mad(d, x, k, y):
        P.s_mov_b32(slit, k)
        P.v_mul_lo_u32(t2, x, slit)
        P.v_add_u32(d, t2, y)

    sodd, sF0, sRowA = S(), S(), S()
    P.s_and_b32(sodd, sj, 1)
    P.s_lshr_b32(sF0, sj, 1)
    P.s_mul_i32(sF0, sF0, 576)
    P.s_mul_i32(st, sodd, 320)
    P.s_add_u32(sRowA, sF0, st)
    colp = V()
    P.v_lshlrev_b32(t0, 6, b2)
    P.v_lshlrev_b32(t1, 4, c4)
    P.v_add_u32(colp, t0, t1)
    hr = V()
    P.v_lshlrev_b32(t0, 2, hh)
    P.v_add_u32(hr, t0, r4)
    vg = [V(), V()]
    w16 = S()
    P.s_lshl_b32(w16, sW, 4)
    for i in range(2):
        P.v_add_u32(t0, w16, hr)
        if i:
            P.v_add_u32(t0, 8, t0)
        mad(vg[i], t0, 9216, colp)
    vd, vd2 = [V(), V(), V()], [V(), V(), V()]
    w24 = S()
    P.s_mul_i32(w24, sW, 24)
    sadj = S()
    P.s_mul_i32(sadj, sodd, 288 * 1152)
    for i in range(3):
        P.v_add_u32(t0, w24, hr)
        if i:
            P.v_add_u32(t0, 8 * i, t0)
        mad(vd[i], t0, 1152, colp)
        P.v_cmp_gt_u32(VCC, 64, t0)
        P.v_mov_b32(t1, sadj)
        P.v_cndmask_b32(t1, 0, t1)
        P.v_add_u32(vd2[i], vd[i], t1)
    aO, aS = [V(), V()], [V(), V()]
    P.v_lshlrev_b32(t0, 9, hh)
    P.v_lshlrev_b32(t1, 6, r4)
    P.v_add_u32(t0, t0, t1)
    P.v_lshlrev_b32(t1, 5, b2)
    P.v_add_u32(t0, t0, t1)
    P.v_lshlrev_b32(t1, 3, c4)
    P.v_add_u32(aO[0], t0, t1)
    P.v_add_u32(aO[1], 0x10000, aO[0])
    P.s_lshl_b32(st, sodd, 8)
    P.v_add_u32(aS[0], st, aO[0])
    P.v_add_u32(aS[1], st, aO[1])
    vl16 = V()
    P.v_lshlrev_b32(vl16, 4, l)
    vP = V()
    P.v_bfe_u32(t0, l, 3, 2)
    P.v_lshlrev_b32(t1, 7, hh)
    mad(vP, t0, 147456, t1)
    P.v_and_b32(t0, 7, l)
    P.v_lshlrev_b32(t0, 4, t0)
    P.v_add_u32(vP, vP, t0)
    sGb, sSb, sDb, sDb2, sHb, sPb = S(), S(), S(), S(), S(), S()
    P.s_lshl_b32(sGb, sRowA, 1)
    P.s_add_u32(sSb, sF0, 256)
    P.s_lshl_b32(sSb, sSb, 1)
    P.s_mul_i32(sDb, sRowA, 1152)
    P.s_add_u32(sDb2, sDb, 192 * 1152)
    P.s_sub_u32(sDb2, sDb2, sadj)
    P.s_mul_i32(sHb, sT, 36 * 1024)
    P.s_mul_i32(sPb, sT, 4 * 147456)
    P.s_mul_i32(st, sj, 9216)
    P.s_add_u32(sPb, sPb, st)
    sD, sHo, sNL = S(), S(), S()
    P.s_mov_b32(sNL, f2u(-LOG2E))

    GACC = lambda stt, i: v(56 + 64 * stt + 16 * i, 16)
    HF = lambda kap: v(184 + 4 * kap, 4)
    TMP = [V() for _ in range(8)]
    HB = [a(4 * i, 4) for i in range(36)]
    STAGE = [a(144 + 4 * i, 4) for i in range(8)]
    DACC = lambda stt, tile: v(88 + 32 * stt + 16 * tile, 16)
    PK = v(152, 16)

    def addr(pair, n, imm):
        slot = (n % NSLOT) * SLOT
        return (pair[slot >> 16], (slot & 0xffff) + imm)

    ND0 = 45
    NCH = 72

    def dma_chunk(n):
        P.capture()
        slot = (n % NSLOT) * SLOT
        tag = f'c{n}'
        if n < ND0:
            p, kc = divmod(n, 9)
            if p < 4:
                P.s_add_u32(sD, sGb, kc * 64 * 9216 + p * 128)
            else:
                P.s_add_u32(sD, sSb, kc * 64 * 9216)
            for i in range(4):
                P.s_add_u32(M0, sW4k, slot + 1024 * i)
                P.dma(vg[i >> 1], r3 if (i & 1) else r1, sD, tag=tag)
            if n < 9:
                P.s_add_u32(sHo, sHb, 4 * n * 1024)
                for jx in range(4):
                    P.buf_load('buffer_load_dwordx4', HB[4 * n + jx], vl16, rH, sHo, offset=1024 * jx)
        else:
            p, c = divmod(n - ND0, 3)
            if c < 2:
                P.s_add_u32(sD, sDb, c * 96 * 1152 + p * 128)
            else:
                P.s_add_u32(sD, sDb2, p * 128)
            for i in range(3):
                P.s_add_u32(M0, sW3k, slot + 1024 * i)
                P.dma((vd2 if c == 2 else vd)[i], r2, sD, tag=tag)
        return P.end_capture()

    St = Stream(P, STAGE, 6)
    last_chunk = ND0 if stop_after == 'G' else NCH
    for n in range(LA, last_chunk):
        St.chunk_dma[n] = dma_chunk(n)
    for n in range(LA):
        P.extend(dma_chunk(n))

    vstreams = []
    gend = {}
    for p in range(5):
        stt = p & 1
        for kc in range(9):
            n = 9 * p + kc
            for ks in range(4):
                kk = 4 * kc + ks
                for tile in range(2 if p < 4 else 1):
                    for mat in range(2):
                        rd = []
                        for q in range(2):
                            if p < 4:
                                ad, imm = addr(aO, n, (2 * ks + q) * 2048 + mat * 1024 + tile * 256)
                            else:
                                ad, imm = addr(aS, n, (2 * ks + q) * 2048 + mat * 1024)
                            rd.append((TR, 2 * q, 2, ad, imm))
                        f = St.new_frag(n, rd)
                        acc = GACC(stt, 2 * tile + mat)
                        St.mfma(acc, f, HB[kk], acc if kk else 0, btouch=(p == 0 and tile == 0 and mat == 0))
        gend[p] = len(St.spine) - 1
    gtot = len(St.spine)

    def swiglu(G, U, q):
        P.capture()
        for e0 in range(0, 16, 2):
            ts = [TMP[(e0 % 4)], TMP[(e0 % 4) + 1]]
            es = [e0, e0 + 1]
            for t, e in zip(ts, es): P.v_mul_f32(t, sNL, G[e])
            for t, e in zip(ts, es): P.v_exp_f32(t, t)
            for t, e in zip(ts, es): P.v_mul_f32(U[e], G[e], U[e])
            for t, e in zip(ts, es): P.v_add_f32(t, 1.0, t)
            for t, e in zip(ts, es): P.v_rcp_f32(t, t)
            P.v_mul_f32(U[es[0]], U[es[0]], ts[0])
            P.v_mul_f32(U[es[1]], U[es[1]], ts[1])
            P.v_cvt_pk_bf16_f32(HF(2 * q + (e0 >> 3))[(e0 & 7) >> 1], U[e0], U[e0 + 1])
        return P.end_capture()

    epi = []
    dbase = gtot
    for p in range(5):
        stt = p & 1
        lo = gend[p] + 3
        if p < 3:
            hi = gend[p + 1] - 1
            epi += win(swiglu(GACC(stt, 0), GACC(stt, 1), 2 * p), lo, hi)
            epi += win(swiglu(GACC(stt, 2), GACC(stt, 3), 2 * p + 1), lo, hi)
        elif stop_after == 'G':
            e = gtot - 1
            if p == 3:
                epi += win(swiglu(GACC(stt, 0), GACC(stt, 1), 6), lo, e)
                epi += win(swiglu(GACC(stt, 2), GACC(stt, 3), 7), lo, e)
            else:
                epi += win(swiglu(GACC(stt, 0), GACC(stt, 1), 8), e, e)
        elif p == 3:
            epi += win(swiglu(GACC(stt, 0), GACC(stt, 1), 6), lo, dbase + 22)
            epi += win(swiglu(GACC(stt, 2), GACC(stt, 3), 7), lo, dbase + 26)
        else:
            epi += win(swiglu(GACC(stt, 0), GACC(stt, 1), 8), lo, dbase + 30)
    vstreams.append(epi)

    if stop_after is None:
        pend = {}
        for p in range(9):
            stt = p & 1
            for c in range(3):
                n = ND0 + 3 * p + c
                for ks in range(6):
                    for tile in range(2):
                        rd = []
                        for q in range(2):
                            ad, imm = addr(aO, n, (4 * ks + 2 * q) * 512 + tile * 256)
                            rd.append((TR, 2 * q, 2, ad, imm))
                        f = St.new_frag(n, rd)
                        acc = DACC(stt, tile)
                        St.mfma(acc, f, HF(6 * c + ks), acc if (c or ks) else 0)
            pend[p] = len(St.spine) - 1
        nsp = len(St.spine)
        ep = []
        for p in range(9):
            P.capture()
            for tile in range(2):
                acc = DACC(p & 1, tile)
                for jj in range(2):
                    pk = PK.sub(8 * tile + 4 * jj, 4)
                    for i in range(4):
                        P.v_cvt_pk_bf16_f32(pk[i], acc[8 * jj + 2 * i], acc[8 * jj + 2 * i + 1])
                    sblk = 2 * (2 * p + tile) + jj
                    P.s_add_u32(st2, sPb, sblk * 256)
                    if not nostore:
                        P.buf_store('buffer_store_dwordx4', pk, vP, rP, st2, mods=store_mods)
            ins = P.end_capture()
            lo = pend[p] + 3
            hi = min(pend[p] + 32, nsp - 1)
            if p == 8:
                lo = hi = nsp - 1
            ep += win(ins, lo, hi)
        vstreams.append(ep)

    if stamps:
        stamp_now(P, SR[1])
        vstreams.append(St.stamp_stream([0, gend[0], gend[3], gtot - 1, len(St.spine) - 1], SR[2:7]))
    P.extend(St.build(vstreams, dma_spacing=2, verbose=verbose))
    if stamps:
        P.waitcnt(vm=0)
        stamp_now(P, SR[7]); stamp_real(P, SR[9])
        stamps_out(P, S, (t0, t1), SR, ptr['ws'], 1)

    if stop_after == 'G':
        P.s_lshl_b32(st, s(2), 2)
        P.s_add_u32(st, st, sW)
        P.s_mul_i32(st, st, 18432)
        for fidx in range(18):
            P.s_add_u32(st2, st, fidx * 1024)
            P.buf_store('buffer_store_dwordx4', HF(fidx), vl16, rP, st2)
    P.label(done)
    P.raw('s_endpgm')
    r = kernel_text(name, P, 512, 256)
    print(name, P.stats())
    return r


if __name__ == '__main__':
    import sys
    t, d = gen_ffn(stop_after=(sys.argv[1] if len(sys.argv) > 1 else None), verbose=True)
    open('ffn.s', 'w').write('.amdgcn_target "amdgcn-amd-amdhsa--gfx950"\n.text\n' + t + '\n')
```

```python
from gen_common import *

NSLOT = 8
SLOT = 16384
LA = 6


class Stream:
    def __init__(self, P, stage, look):
        self.P = P
        self.stage = stage
        self.look = look
        self.spine = []
        self.frags = []
        self.touch = []
        self.chunk_dma = {}
        self.extra_touch = []

    def new_frag(self, chunk, reads, look=None):
        f = dict(chunk=chunk, reads=reads, first=None, last=None, id=len(self.frags), look=look or self.look)
        self.frags.append(f)
        return f

    def reg(self, f):
        return self.stage[f['id'] % len(self.stage)]

    def mfma(self, d, f, b, c, btouch=False):
        P = self.P
        i = len(self.spine)
        if f['first'] is None:
            f['first'] = i
        f['last'] = i
        P.capture()
        P.mfma(d, self.reg(f), b, c)
        self.spine += P.end_capture()
        if btouch:
            self.extra_touch.append((i, b))
        return i

    def stamp_stream(self, marks, regs):
        P = self.P
        out = []
        for g, r in zip(marks, regs):
            P.capture()
            P.add(I(f's_memtime {r}', regs_of([r]), (), 's_load'))
            out += win(P.end_capture(), g, g)
        return out

    def build(self, other_streams, dma_spacing=2, verbose=False, first_reads_outside=True, tail_cost=None):
        P = self.P
        n = len(self.spine)
        reads, touches, sw, dm = [], [], [], []
        ns = len(self.stage)
        first_read_gap = {}
        for f in self.frags:
            g = f['first'] - f['look']
            if f['id'] >= ns:
                prev = self.frags[f['id'] - ns]
                g = max(g, prev['last'])
            g = max(g, -1)
            f['gap'] = g
            assert g < f['first']
            P.capture()
            st = self.reg(f)
            for (op, lo, cnt, addr, imm) in f['reads']:
                P.ds_read(op, st.sub(lo, cnt), addr, imm)
            reads += win(P.end_capture(), g, g)
            c = f['chunk']
            if c not in first_read_gap:
                first_read_gap[c] = g
            P.capture()
            P.touch(st)
            tg = f['first'] - 1
            touches += win(P.end_capture(), tg, tg)
        for (i, b) in self.extra_touch:
            P.capture()
            P.touch(b)
            touches += win(P.end_capture(), i - 1, i - 1)
        touches.sort(key=lambda x: x[1])
        chunks = sorted(first_read_gap)
        self.bar_gap = {}
        for c in chunks:
            gb = first_read_gap[c] - 1
            self.bar_gap[c] = gb
            gb = max(gb, -1)
            P.capture()
            P.wait_tag(f'c{c}', 0)
            P.barrier()
            sw += win(P.end_capture(), gb, gb)
        for c in chunks:
            d = self.chunk_dma.get(c + LA)
            if not d:
                continue
            gb = max(self.bar_gap[c], -1)
            g = gb + 1
            pend = []
            for x in d:
                if x.kind == 'dma' or x.kind == 'vm_load':
                    gg = min(g, n - 1)
                    for y in pend:
                        dm.append((y, min(max(gb + 1, gg - 1), gg), gg))
                    pend = []
                    dm.append((x, gg, gg))
                    g += dma_spacing
                else:
                    pend.append(x)
            for y in pend:
                dm.append((y, min(g, n - 1), min(g, n - 1)))
        pre = [x for x in sw if x[2] < 0]
        sw = [x for x in sw if x[2] >= 0]
        out = [x[0] for x in pre]
        out += schedule(self.spine, [touches, reads, sw, dm] + other_streams, verbose=verbose)
        return out


def stamp_now(P, r):
    P.add(I(f's_memtime {r}', regs_of([r]), (), 's_load'))


def stamp_real(P, r):
    P.add(I(f's_memrealtime {r}', regs_of([r]), (), 's_load'))


def stamps_out(P, S, V3, regs, ptr_ws, kidx):
    rs = S(4)
    make_srd(P, rs, ptr_ws, 0x100000, 0x4000000)
    so = S()
    t0, t1 = V3
    P.waitcnt(lgkm=0)
    P.s_lshl_b32(so, s(2), 8)
    P.s_add_u32(so, so, kidx * 0x10000)
    P.v_lshrrev_b32(t0, 6, v(0))
    P.v_lshlrev_b32(t0, 6, t0)
    for i, r in enumerate(regs):
        P.v_mov_b32(t1, r[0])
        P.buf_store('buffer_store_dword', t1, t0, rs, so, offset=4 * i)
```

```python
import sys
from gen_small import gen_mod, gen_row
from gen_common import *

HEADER = '''; adaLN block: LN1 -> Q proj -> sliding-window GQA attention -> out proj -> LN2 -> SwiGLU FFN, hand-scheduled for gfx950.
'''

def build(kernels):
    out = [HEADER.rstrip()]
    for name, td, grid, block, lds in kernels:
        out.append(f'; @launch kernel={name} grid=({grid},1,1) block=({block},1,1) lds={lds}')
    out.append('.amdgcn_target "amdgcn-amd-amdhsa--gfx950"')
    out.append('.text')
    seen = set()
    for name, td, grid, block, lds in kernels:
        if name not in seen:
            out.append(td[0])
            seen.add(name)
    out.append('.section .rodata,"a"')
    seen = set()
    for name, td, grid, block, lds in kernels:
        if name not in seen:
            out.append(td[1])
            seen.add(name)
    return '\n'.join(out) + '\n'

def make(variant, **kw):
    from gen_attn import gen_attn
    ks = [('mod_kernel', gen_mod(), 54, 256, 8192),
          ('ln1_kernel', gen_row('ln1', 'ln1_kernel'), 256, 576, 1024)]
    if variant in ('Q', 'A'):
        ks.append(('attn_kernel', gen_attn(stop_after=variant), 256, 256, 131072))
        return build(ks)
    ks.append(('attn_kernel', gen_attn(**kw), 256, 256, 131072))
    ks.append(('r1_kernel', gen_row('r1', 'r1_kernel'), 256, 576, 1024))
    if variant == 'R1':
        return build(ks)
    from gen_ffn import gen_ffn
    if variant in ('G',):
        ks.append(('ffn_kernel', gen_ffn(stop_after=variant), 256, 256, 131072))
        return build(ks)
    ks.append(('ffn_kernel', gen_ffn(**kw), 256, 256, 131072))
    ks.append(('r2_kernel', gen_row('r2', 'r2_kernel'), 256, 576, 1024))
    return build(ks)

if __name__ == '__main__':
    variant = sys.argv[1] if len(sys.argv) > 1 else 'full'
    path = sys.argv[2] if len(sys.argv) > 2 else 'out.s'
    kw = {}
    for a in sys.argv[3:]:
        k, val = a.split('=')
        kw[k] = eval(val)
    txt = make(variant, **kw)
    open(path, 'w').write(txt)
    print(path, len(txt), 'bytes')
```
